```python
import torch

def _softmax(x, axis=-1):
    return torch.softmax(x, dim=axis)
def _gelu(x):
    return torch.nn.functional.gelu(x, approximate="tanh")
def _silu(x):
    return torch.nn.functional.silu(x)
def _sigmoid(x):
    return torch.sigmoid(x)
def _layernorm(x, axis=-1, eps=1e-5):
    m = x.mean(dim=axis, keepdim=True)
    v = x.var(dim=axis, keepdim=True, unbiased=False)
    return (x - m) / torch.sqrt(v + eps)
def _scatter_add(tgt, idx, src, axis=0):
    return tgt.clone().index_add_(axis, idx, src)
def _segment_sum(src, seg, n):
    out = torch.zeros((n,) + src.shape[1:], dtype=src.dtype)
    return out.index_add_(0, seg, src)
def _pad(x, pw):
    flat = tuple(v for pair in reversed(pw) for v in pair)
    return torch.nn.functional.pad(x, flat)

kernel_name = 'standalone__gqa_block_cached__near_ridge'

def setup_inputs():

    _w = (lambda a: (lambda t: t.to(torch.bfloat16) if t.is_floating_point() else t)(torch.as_tensor(a)))
    B, Sq, D = 8, 256, 512
    Hq, Hkv, Sk, Dh = 32, 32, 1024, 128
    assert Hq % Hkv == 0, (Hq, Hkv)
    return {
        "x": _w((lambda *s: torch.randn(*s, dtype=torch.bfloat16) * 0.8)(B, Sq, D)),
        "k_cache": _w((lambda *s: torch.randn(*s, dtype=torch.bfloat16) * 0.8)(B, Hkv, Sk, Dh)),
        "v_cache": _w((lambda *s: torch.randn(*s, dtype=torch.bfloat16) * 0.05)(B, Hkv, Sk, Dh)),
        "wq": _w((lambda *s: torch.randn(*s, dtype=torch.bfloat16) * 0.8)(D, Hq * Dh) * (D ** -0.5)),
        "wo": _w((lambda *s: torch.randn(*s, dtype=torch.bfloat16) * 0.05)(Hq * Dh, D) * ((Hq * Dh) ** -0.5)),
    }

def reference(x, k_cache, v_cache, wq, wo):
    B, Sq, D = x.shape
    Hq, Dh = 32, 128
    Hkv = k_cache.shape[1]
    rep = Hq // Hkv
    q = (lambda x, *d: x.permute(*d))((x @ wq).reshape(B, Sq, Hq, Dh), 0, 2, 1, 3)
    k = (lambda x, n, axis: torch.repeat_interleave(x, n, dim=axis))(k_cache, rep, axis=1)
    v = (lambda x, n, axis: torch.repeat_interleave(x, n, dim=axis))(v_cache, rep, axis=1)
    scores = torch.einsum("bhqd,bhkd->bhqk", q, k) * (Dh ** -0.5)
    p = _softmax(scores, axis=-1)
    o = torch.einsum("bhqk,bhkd->bhqd", p, v)
    return (lambda x, *d: x.permute(*d))(o, 0, 2, 1, 3).reshape(B, Sq, Hq * Dh) @ wo
```

```python
import sys, math

class A:
    def __init__(s):
        s.L = []
        s.ds_seq = 0
        s.ds_done = 0
    def e(s, t): s.L.append("    " + t)
    def lab(s, t): s.L.append(t + ":")
    def c(s, t): s.L.append("    ; " + t)
    def ds(s, t):
        s.e(t); s.ds_seq += 1; return s.ds_seq
    def wait_ds(s, seq):
        if seq <= s.ds_done: return
        n = s.ds_seq - seq
        n = min(n, 15)
        s.e(f"s_waitcnt lgkmcnt({n})")
        s.ds_done = s.ds_seq - n
    def ds_reset(s):
        s.ds_seq = 0; s.ds_done = 0

def vr(a, n): return f"v[{a}:{a+n-1}]"

vLane = 1; vT0 = 2; vT1 = 3; vT2 = 4; vT3 = 5
vKa = 8
vVa = 16
vWa = 20
vDK0 = 24; vDK1 = 25; vDV = 26; vDW0 = 27; vDW1 = 28; vX = 29
vM = 30; vLs = 31
vQ = 32
vO = 64
vS = [128, 160]
vP = 192
vF = 208
NF = 6
vAl = 232; vMc = 233; vOo = 234
NVG1 = 240
sB = 3; sH = 33; sW = 34
SX = 12; SK = 16; SV = 20; SWQ = 24; SO = 28
sC = 35
sTile = 36
sTileV = 37
sM0K = 38; sM0V = 39; sM0W = 40
sWqOff = 41
sLoop = 42
KRING = 0; VRING = 65536; WBUF = 131072
SCALE = (128 ** -0.5) * math.log2(math.e)
import struct
def f32hex(x): return "0x%08x" % struct.unpack("<I", struct.pack("<f", x))[0]

def interleave(a, mfmas, valu, per=None):
    n = len(mfmas); tot = len(valu); done = 0
    for i, m in enumerate(mfmas):
        m()
        upto = (tot * (i + 1)) // n
        while done < upto:
            a.e(valu[done]); done += 1

class FragPool:
    def __init__(s): s.i = 0
    def get(s):
        r = vF + 4 * (s.i % NF); s.i += 1; return r

def dma_tile(a, srd, voff0, voff1, soff, m0sreg, slot_imm):
    a.e(f"s_add_u32 m0, s{m0sreg}, {slot_imm}")
    a.e("s_nop 0")
    a.e(f"buffer_load_dwordx4 v{voff0}, s[{srd}:{srd+3}], s{soff} offen lds")
    a.e(f"buffer_load_dwordx4 v{voff1}, s[{srd}:{srd+3}], s{soff} offen offset:1024 lds")

def qk_ops(a, pool, slot, Sdst):
    items = [(kb, s) for kb in range(2) for s in range(8)]
    st = {}
    def rd(j):
        kb, s = items[j]
        r = pool.get()
        seq = a.ds(f"ds_read_b128 {vr(r,4)}, v{vKa+s} offset:{KRING+slot*16384+kb*8192}")
        st[j] = (r, seq)
    PF = NF - 1
    ops = []
    def mk(j):
        def f():
            if j == 0:
                for x in range(PF): rd(x)
            if j + PF < len(items) and j > 0: rd(j + PF - 1 + 0) if False else None
            kb, s = items[j]
            r, seq = st[j]
            a.wait_ds(seq)
            acc = Sdst + kb * 16
            cin = "0" if s == 0 else vr(acc, 16)
            a.e(f"v_mfma_f32_32x32x16_bf16 {vr(acc,16)}, {vr(r,4)}, {vr(vQ+4*s,4)}, {cin}")
            if j + PF < len(items): rd(j + PF)
        return f
    return [mk(j) for j in range(len(items))]

def pv_ops(a, pool, slot):
    items = [(db, kb, u) for db in range(4) for kb in range(2) for u in range(2)]
    st = {}
    def rd(j):
        db, kb, u = items[j]
        r = pool.get()
        base = slot * 16384 + (32 * kb + 16 * u) * 256
        a.ds(f"ds_read_b64_tr_b16 {vr(r,2)}, v{vVa+db} offset:{base}")
        seq = a.ds(f"ds_read_b64_tr_b16 {vr(r+2,2)}, v{vVa+db} offset:{base+2048}")
        st[j] = (r, seq)
    PF = NF - 1
    def mk(j):
        def f():
            if j == 0:
                for x in range(PF): rd(x)
            db, kb, u = items[j]
            r, seq = st[j]
            a.wait_ds(seq)
            acc = vO + db * 16
            a.e(f"v_mfma_f32_32x32x16_bf16 {vr(acc,16)}, {vr(r,4)}, {vr(vP+(kb*2+u)*4,4)}, {vr(acc,16)}")
            if j + PF < len(items): rd(j + PF)
        return f
    return [mk(j) for j in range(len(items))]

def softmax_part1(S):
    v = []
    vals = [S + i for i in range(32)]
    v.append(f"v_max3_f32 v{vT0}, v{S+0}, v{S+1}, v{S+2}")
    v.append(f"v_max3_f32 v{vT1}, v{S+3}, v{S+4}, v{S+5}")
    v.append(f"v_max3_f32 v{vT2}, v{S+6}, v{S+7}, v{S+8}")
    v.append(f"v_max3_f32 v{vT3}, v{S+9}, v{S+10}, v{S+11}")
    k = 12; t = 0
    T = [vT0, vT1, vT2, vT3]
    while k < 32:
        v.append(f"v_max3_f32 v{T[t]}, v{T[t]}, v{S+k}, v{S+k+1}")
        k += 2; t = (t + 1) % 4
    v.append(f"v_max3_f32 v{vT0}, v{vT0}, v{vT1}, v{vT2}")
    v.append(f"v_max_f32 v{vT0}, v{vT0}, v{vT3}")
    v.append(f"v_mov_b32 v{vT1}, v{vT0}")
    v.append("s_nop 1")
    v.append(f"v_permlane32_swap_b32 v{vT0}, v{vT1}")
    v.append(f"v_max3_f32 v{vT0}, v{vT0}, v{vT1}, v{vM}")
    v.append(f"v_sub_f32 v{vT1}, v{vM}, v{vT0}")
    v.append(f"v_mul_f32 v{vMc}, s{sC}, v{vT0}")
    v.append(f"v_mul_f32 v{vT1}, s{sC}, v{vT1}")
    v.append(f"v_mov_b32 v{vM}, v{vT0}")
    v.append(f"v_exp_f32 v{vAl}, v{vT1}")
    for i in range(32 + 2):
        if i < 32: v.append(f"v_fma_f32 v{S+i}, v{S+i}, s{sC}, -v{vMc}")
        if i == 1: v.append(f"v_mul_f32 v{vLs}, v{vLs}, v{vAl}")
        if 0 <= i - 1 < 32: v.append(f"v_exp_f32 v{S+i-1}, v{S+i-1}")
        if 0 <= i - 2 < 32: v.append(f"v_add_f32 v{vLs}, v{vLs}, v{S+i-2}")
    return v

def softmax_part2(S, rescale=True):
    v = []
    for j in range(16):
        v.append(f"v_cvt_pk_bf16_f32 v{vP+j}, v{S+2*j}, v{S+2*j+1}")
    if rescale:
        for i in range(64):
            v.append(f"v_mul_f32 v{vO+i}, v{vO+i}, v{vAl}")
    return v

def attn_iter(a, pool, t, do_pv, do_qk):
    a.c(f"---- iteration t%4={t%4} pv={do_pv} qk={do_qk}")
    a.e("s_waitcnt vmcnt(8)")
    a.e("s_barrier")
    dma_tile(a, SK, vDK0, vDK1, sTile, sM0K, (t % 4) * 16384)
    dma_tile(a, SV, vDV, vDV, sTileV, sM0V, ((t + 2) % 4) * 16384)
    a.e(f"s_add_u32 s{sTile}, s{sTile}, 16384")
    a.e(f"s_add_u32 s{sTileV}, s{sTileV}, 16384")
    S = vS[t % 2]
    p1 = softmax_part1(S); p2 = softmax_part2(S)
    if do_pv:
        interleave(a, pv_ops(a, pool, (t - 1) % 4), p1)
    else:
        for x in p1: a.e(x)
    if do_qk:
        interleave(a, qk_ops(a, pool, (t + 1) % 4, vS[(t + 1) % 2]), p2)
    else:
        a.e("s_nop 7"); a.e("s_nop 7")
        for x in p2: a.e(x)

def gen_attn(a):
    a.lab("attn_kernel")
    a.e("s_cmp_ge_u32 s2, 256")
    a.e("s_cbranch_scc1 L_attn_done")
    a.e("s_load_dwordx4 s[44:47], s[0:1], 0")
    a.e("s_load_dwordx4 s[48:51], s[0:1], 16")
    a.e("s_load_dwordx2 s[52:53], s[0:1], 56")
    a.e(f"s_lshr_b32 s{sB}, s2, 5")
    a.e(f"s_and_b32 s{sH}, s2, 31")
    a.e(f"v_lshrrev_b32 v{vT0}, 6, v0")
    a.e(f"v_and_b32 v{vLane}, 63, v0")
    a.e("s_nop 0")
    a.e(f"v_readfirstlane_b32 s{sW}, v{vT0}")
    a.e("s_waitcnt lgkmcnt(0)")
    a.e(f"s_lshl_b32 s54, s{sB}, 18")
    a.e(f"s_add_u32 s{SX}, s44, s54"); a.e(f"s_addc_u32 s{SX+1}, s45, 0")
    a.e(f"s_mov_b32 s{SX+2}, 262144"); a.e(f"s_mov_b32 s{SX+3}, 0x00020000")
    a.e("s_lshl_b32 s54, s2, 18")
    a.e(f"s_add_u32 s{SK}, s46, s54"); a.e(f"s_addc_u32 s{SK+1}, s47, 0")
    a.e(f"s_mov_b32 s{SK+2}, 262144"); a.e(f"s_mov_b32 s{SK+3}, 0x00020000")
    a.e(f"s_add_u32 s{SV}, s48, s54"); a.e(f"s_addc_u32 s{SV+1}, s49, 0")
    a.e(f"s_mov_b32 s{SV+2}, 262144"); a.e(f"s_mov_b32 s{SV+3}, 0x00020000")
    a.e(f"s_lshl_b32 s54, s{sH}, 8")
    a.e(f"s_add_u32 s{SWQ}, s50, s54"); a.e(f"s_addc_u32 s{SWQ+1}, s51, 0")
    a.e(f"s_sub_u32 s{SWQ+2}, 4194304, s54"); a.e(f"s_mov_b32 s{SWQ+3}, 0x00020000")
    a.e(f"s_lshl_b32 s54, s{sB}, 21"); a.e(f"s_lshl_b32 s55, s{sH}, 13"); a.e("s_add_u32 s54, s54, s55")
    a.e(f"s_add_u32 s{SO}, s52, s54"); a.e(f"s_addc_u32 s{SO+1}, s53, 0")
    a.e(f"s_sub_u32 s{SO+2}, 16777216, s54"); a.e(f"s_mov_b32 s{SO+3}, 0x00020000")
    a.e(f"s_mov_b32 s{sC}, {f32hex(SCALE)}")
    q, hh, g, r, c4 = 40, 41, 42, 43, 44
    t5, t6, t7 = 45, 46, 47
    a.e(f"v_and_b32 v{q}, 31, v{vLane}")
    a.e(f"v_lshrrev_b32 v{hh}, 5, v{vLane}")
    a.e(f"v_lshrrev_b32 v{g}, 4, v{vLane}")
    a.e(f"v_bfe_u32 v{r}, v{vLane}, 2, 2")
    a.e(f"v_and_b32 v{c4}, 3, v{vLane}")
    a.e(f"v_and_b32 v{t5}, 15, v{q}")
    a.e(f"v_xor_b32 v{t5}, v{t5}, v{hh}")
    for s in range(8):
        a.e(f"v_xor_b32 v{t6}, {2*s}, v{t5}")
        a.e(f"v_lshlrev_b32 v{t6}, 4, v{t6}")
        a.e(f"v_lshl_add_u32 v{vKa+s}, v{q}, 8, v{t6}")
    a.e(f"v_lshrrev_b32 v{t5}, 1, v{g}")
    a.e(f"v_lshl_add_u32 v{t6}, v{t5}, 2, v{r}")
    a.e(f"v_lshlrev_b32 v{t6}, 8, v{t6}")
    a.e(f"v_and_b32 v{t7}, 1, v{g}")
    a.e(f"v_lshl_add_u32 v{t6}, v{t7}, 5, v{t6}")
    a.e(f"v_lshl_add_u32 v{t6}, v{c4}, 3, v{t6}")
    a.e(f"v_add_u32 v{t6}, {VRING}, v{t6}")
    for db in range(4):
        a.e(f"v_xor_b32 v{t7}, {db}, v{r}")
        a.e(f"v_lshl_add_u32 v{vVa+db}, v{t7}, 6, v{t6}")
    a.e(f"v_lshl_add_u32 v{t6}, v{t5}, 3, v{r}")
    a.e(f"v_lshlrev_b32 v{t6}, 8, v{t6}")
    a.e(f"v_and_b32 v{t7}, 1, v{g}")
    a.e(f"v_lshl_add_u32 v{t6}, v{t7}, 5, v{t6}")
    a.e(f"v_and_b32 v{t7}, 1, v{c4}")
    a.e(f"v_lshl_add_u32 v{t6}, v{t7}, 4, v{t6}")
    a.e(f"v_lshrrev_b32 v{t7}, 1, v{c4}")
    a.e(f"v_lshl_add_u32 v{t6}, v{t7}, 3, v{t6}")
    a.e(f"v_add_u32 v{t6}, {WBUF}, v{t6}")
    for db in range(4):
        a.e(f"v_xor_b32 v{t7}, {db}, v{r}")
        a.e(f"v_lshl_add_u32 v{vWa+db}, v{t7}, 6, v{t6}")
    a.e(f"s_lshl_b32 s54, s{sW}, 3")
    a.e(f"v_add_u32 v{t5}, s54, v{g}")
    a.e(f"v_and_b32 v{t6}, 15, v{vLane}")
    a.e(f"v_and_b32 v{t7}, 15, v{t5}")
    a.e(f"v_xor_b32 v{t7}, v{t7}, v{t6}")
    a.e(f"v_lshlrev_b32 v{t7}, 4, v{t7}")
    a.e(f"v_lshl_add_u32 v{vDK0}, v{t5}, 8, v{t7}")
    a.e(f"v_add_u32 v{t7}, 4, v{t5}")
    a.e(f"v_and_b32 v{t7}, 15, v{t7}")
    a.e(f"v_xor_b32 v{t7}, v{t7}, v{t6}")
    a.e(f"v_lshlrev_b32 v{t7}, 4, v{t7}")
    a.e(f"v_lshl_add_u32 v{vDK1}, v{t5}, 8, v{t7}")
    a.e(f"v_and_b32 v{t7}, 3, v{t5}")
    a.e(f"v_lshlrev_b32 v{t7}, 2, v{t7}")
    a.e(f"v_xor_b32 v{t7}, v{t7}, v{t6}")
    a.e(f"v_lshlrev_b32 v{t7}, 4, v{t7}")
    a.e(f"v_lshl_add_u32 v{vDV}, v{t5}, 8, v{t7}")
    a.e(f"v_lshl_add_u32 v{vDW0}, v{t5}, 13, v{t7}")
    a.e(f"v_add_u32 v{vDW1}, 31744, v{vDW0}")
    a.e(f"s_lshl_b32 s54, s{sW}, 5")
    a.e(f"v_add_u32 v{t5}, s54, v{q}")
    a.e(f"v_lshlrev_b32 v{t5}, 10, v{t5}")
    a.e(f"v_lshl_add_u32 v{vX}, v{hh}, 4, v{t5}")
    a.e(f"s_lshl_b32 s54, s{sW}, 18")
    a.e(f"v_lshlrev_b32 v{t5}, 4, v{vLane}")
    a.e(f"v_add_u32 v{vOo}, s54, v{t5}")
    a.e(f"s_lshl_b32 s54, s{sW}, 11")
    a.e(f"s_add_u32 s{sM0K}, s54, {KRING}")
    a.e(f"s_add_u32 s{sM0V}, s54, {VRING}")
    a.e(f"s_add_u32 s{sM0W}, s54, {WBUF}")
    a.e(f"s_mov_b32 s{sTile}, 0"); a.e(f"s_mov_b32 s{sTileV}, 0"); a.e(f"s_mov_b32 s{sWqOff}, 0")
    def xload(c):
        for s in range(4):
            a.e(f"buffer_load_dwordx4 {vr(vO+(c%2)*16+4*s,4)}, v{vX}, s[{SX}:{SX+3}], 0 offen offset:{c*128+s*32}")
    def wload(c):
        dma_tile(a, SWQ, vDW0, vDW1, sWqOff, sM0W, (c % 2) * 16384)
        a.e(f"s_add_u32 s{sWqOff}, s{sWqOff}, 524288")
    def kpart(slot):
        dma_tile(a, SK, vDK0, vDK1, sTile, sM0K, slot * 16384); a.e(f"s_add_u32 s{sTile}, s{sTile}, 16384")
    def vpart(slot):
        dma_tile(a, SV, vDV, vDV, sTileV, sM0V, slot * 16384); a.e(f"s_add_u32 s{sTileV}, s{sTileV}, 16384")
    kvparts = {1: lambda: kpart(0), 2: lambda: kpart(1), 3: lambda: vpart(0), 4: lambda: kpart(2), 5: lambda: vpart(1), 6: lambda: kpart(3)}
    wload(0); xload(0)
    pool = FragPool()
    QA = vS[0]
    for c in range(8):
        a.c(f"-- qproj chunk {c}")
        a.e(f"s_waitcnt vmcnt({2 if c >= 2 else 0})")
        a.e("s_barrier")
        if c < 7: wload(c + 1); xload(c + 1)
        if c in kvparts: kvparts[c]()
        items = [(s, db) for s in range(4) for db in range(4)]
        st = {}
        def rd(j):
            s, db = items[j]
            rr = pool.get()
            base = (c % 2) * 16384 + s * 4096
            a.ds(f"ds_read_b64_tr_b16 {vr(rr,2)}, v{vWa+db} offset:{base}")
            seq = a.ds(f"ds_read_b64_tr_b16 {vr(rr+2,2)}, v{vWa+db} offset:{base+1024}")
            st[j] = (rr, seq)
        PF = NF - 1
        for x in range(PF): rd(x)
        for j, (s, db) in enumerate(items):
            rr, seq = st[j]
            a.wait_ds(seq)
            acc = QA + db * 16
            cin = "0" if (c == 0 and s == 0) else vr(acc, 16)
            a.e(f"v_mfma_f32_32x32x16_bf16 {vr(acc,16)}, {vr(rr,4)}, {vr(vO+(c%2)*16+4*s,4)}, {cin}")
            if j + PF < len(items): rd(j + PF)
    a.e("s_nop 7"); a.e("s_nop 7")
    for db in range(4):
        for j in range(8):
            a.e(f"v_cvt_pk_bf16_f32 v{vQ+db*8+j}, v{QA+db*16+2*j}, v{QA+db*16+2*j+1}")
    for i in range(64): a.e(f"v_mov_b32 v{vO+i}, 0")
    a.e(f"v_mov_b32 v{vM}, 0xff800000")
    a.e(f"v_mov_b32 v{vLs}, 0")
    a.e("s_waitcnt vmcnt(10)")
    a.e("s_barrier")
    for m in qk_ops(a, pool, 0, vS[0]): m()
    attn_iter(a, pool, 0, False, True)
    a.e(f"s_mov_b32 s{sLoop}, 0")
    a.lab("L_attn_loop")
    a.ds_reset()
    for t in (1, 2, 3, 4):
        attn_iter(a, pool, t, True, True)
    a.e(f"s_add_u32 s{sLoop}, s{sLoop}, 1")
    a.e(f"s_cmp_lt_u32 s{sLoop}, 3")
    a.e("s_cbranch_scc1 L_attn_loop")
    a.ds_reset()
    attn_iter(a, pool, 13, True, True)
    attn_iter(a, pool, 14, True, True)
    attn_iter(a, pool, 15, True, False)
    for m in pv_ops(a, pool, 15 % 4): m()
    a.e(f"v_mov_b32 v{vT1}, v{vLs}")
    a.e("s_nop 1")
    a.e(f"v_permlane32_swap_b32 v{vLs}, v{vT1}")
    a.e(f"v_add_f32 v{vLs}, v{vLs}, v{vT1}")
    a.e(f"v_rcp_f32 v{vAl}, v{vLs}")
    a.e("s_nop 7"); a.e("s_nop 7")
    a.e("s_mov_b32 s54, 4096")
    for db in range(4):
        for u in range(2):
            base = vO + db * 16 + 8 * u
            for j in range(8):
                a.e(f"v_mul_f32 v{base+j}, v{base+j}, v{vAl}")
            dst = vP + (db * 2 + u) % 4 * 4
            for j in range(4):
                a.e(f"v_cvt_pk_bf16_f32 v{dst+j}, v{base+2*j}, v{base+2*j+1}")
            idx = db * 2 + u
            so = "0" if idx < 4 else "s54"
            a.e(f"buffer_store_dwordx4 {vr(dst,4)}, v{vOo}, s[{SO}:{SO+3}], {so} offen offset:{(idx%4)*1024}")
    a.lab("L_attn_done")
    a.e("s_endpgm")

def gen_gemm(a):
    a.lab("oproj_kernel")
    vL = 1; vBo0 = 2; vBo1 = 3; vD = 4; vA0 = 5; vA1 = 6; vt0 = 7; vt1 = 8; vt2 = 9; vRed = 10; vOut = 11
    vB = 16
    vAcc = 112
    vFr = 176
    NFR = 8
    SOf = 12; SWo = 16; SOut = 20
    sWv = 34; sCh = 36; sWoOff = 37; sTmp = 38
    a.e("s_cmp_ge_u32 s2, 256")
    a.e("s_cbranch_scc1 L_gemm_done")
    a.e("s_load_dwordx4 s[44:47], s[0:1], 32")
    a.e("s_load_dwordx2 s[52:53], s[0:1], 56")
    a.e("s_lshr_b32 s3, s2, 3")
    a.e("s_and_b32 s33, s2, 7")
    a.e(f"v_lshrrev_b32 v{vt0}, 6, v0")
    a.e(f"v_and_b32 v{vL}, 63, v0")
    a.e("s_nop 0")
    a.e(f"v_readfirstlane_b32 s{sWv}, v{vt0}")
    a.e("s_waitcnt lgkmcnt(0)")
    a.e("s_lshl_b32 s54, s3, 19"); a.e(f"s_lshl_b32 s55, s{sWv}, 16"); a.e("s_add_u32 s54, s54, s55")
    a.e(f"s_add_u32 s{SOf}, s52, s54"); a.e(f"s_addc_u32 s{SOf+1}, s53, 0")
    a.e(f"s_sub_u32 s{SOf+2}, 16777216, s54"); a.e(f"s_mov_b32 s{SOf+3}, 0x00020000")
    a.e(f"s_lshl_b32 s54, s{sWv}, 20"); a.e("s_lshl_b32 s55, s33, 7"); a.e("s_add_u32 s54, s54, s55")
    a.e(f"s_add_u32 s{SWo}, s44, s54"); a.e(f"s_addc_u32 s{SWo+1}, s45, 0")
    a.e(f"s_sub_u32 s{SWo+2}, 4194304, s54"); a.e(f"s_mov_b32 s{SWo+3}, 0x00020000")
    a.e("s_lshl_b32 s54, s3, 16"); a.e("s_add_u32 s54, s54, s55")
    a.e(f"s_add_u32 s{SOut}, s46, s54"); a.e(f"s_addc_u32 s{SOut+1}, s47, 0")
    a.e(f"s_sub_u32 s{SOut+2}, 2097152, s54"); a.e(f"s_mov_b32 s{SOut+3}, 0x00020000")
    a.e(f"v_lshlrev_b32 v{vBo0}, 4, v{vL}")
    a.e(f"v_add_u32 v{vBo1}, 262144, v{vBo0}")
    a.e(f"v_lshrrev_b32 v{vt0}, 3, v{vL}")
    a.e(f"v_and_b32 v{vt1}, 7, v{vL}")
    a.e(f"v_bfe_u32 v{vt2}, v{vL}, 4, 1")
    a.e(f"v_lshlrev_b32 v{vt2}, 2, v{vt2}")
    a.e(f"v_xor_b32 v{vt1}, v{vt1}, v{vt2}")
    a.e(f"v_lshlrev_b32 v{vt1}, 4, v{vt1}")
    a.e(f"v_lshl_add_u32 v{vD}, v{vt0}, 10, v{vt1}")
    a.e(f"v_lshrrev_b32 v{vt0}, 5, v{vL}")
    a.e(f"v_bfe_u32 v{vt1}, v{vL}, 2, 2")
    a.e(f"v_lshl_add_u32 v{vt0}, v{vt0}, 2, v{vt1}")
    a.e(f"v_lshlrev_b32 v{vt0}, 7, v{vt0}")
    a.e(f"v_bfe_u32 v{vt2}, v{vL}, 4, 1")
    a.e(f"v_lshl_add_u32 v{vt0}, v{vt2}, 5, v{vt0}")
    a.e(f"v_and_b32 v{vt2}, 3, v{vL}")
    a.e(f"v_lshl_add_u32 v{vt0}, v{vt2}, 3, v{vt0}")
    a.e(f"s_mul_i32 s54, s{sWv}, 24576")
    a.e(f"v_add_u32 v{vt0}, s54, v{vt0}")
    a.e(f"v_lshrrev_b32 v{vt1}, 1, v{vt1}")
    a.e(f"v_lshl_add_u32 v{vA0}, v{vt1}, 6, v{vt0}")
    a.e(f"v_xor_b32 v{vt1}, 1, v{vt1}")
    a.e(f"v_lshl_add_u32 v{vA1}, v{vt1}, 6, v{vt0}")
    a.e(f"s_mov_b32 s{sCh}, 0"); a.e(f"s_mov_b32 s{sWoOff}, 0")
    a.e(f"s_mov_b32 s39, s54")
    def load_chunk(buf):
        for mb in range(2):
            for s in range(4):
                a.e(f"buffer_load_dwordx4 {vr(vB+buf*32+mb*16+s*4,4)}, v{vBo0 if mb==0 else vBo1}, s[{SOf}:{SOf+3}], s{sCh} offen offset:{s*1024}")
        a.e(f"s_add_u32 s{sCh}, s{sCh}, 4096")
        for i in range(8):
            a.e(f"s_add_u32 m0, s39, {buf*8192+i*1024}")
            a.e(f"s_add_u32 s{sTmp}, s{sWoOff}, {i*8192}")
            a.e(f"buffer_load_dwordx4 v{vD}, s[{SWo}:{SWo+3}], s{sTmp} offen lds")
        a.e(f"s_add_u32 s{sWoOff}, s{sWoOff}, 65536")
    load_chunk(0); load_chunk(1)
    pi = [0]
    def getf():
        r = vFr + 4 * (pi[0] % NFR); pi[0] += 1; return r
    for ch in range(16):
        buf = ch % 3
        a.c(f"-- chunk {ch}")
        if ch + 2 < 16:
            load_chunk((ch + 2) % 3)
            a.e("s_waitcnt vmcnt(32)")
        elif ch + 1 < 16:
            a.e("s_waitcnt vmcnt(16)")
        else:
            a.e("s_waitcnt vmcnt(0)")
        items = [(s, nb) for s in range(4) for nb in range(2)]
        st = {}
        def rd(j):
            s, nb = items[j]
            rr = getf()
            base = buf * 8192 + 16 * s * 128
            a.ds(f"ds_read_b64_tr_b16 {vr(rr,2)}, v{vA0 if nb==0 else vA1} offset:{base}")
            seq = a.ds(f"ds_read_b64_tr_b16 {vr(rr+2,2)}, v{vA0 if nb==0 else vA1} offset:{base+1024}")
            st[j] = (rr, seq)
        PF = 4
        for x in range(PF): rd(x)
        for j, (s, nb) in enumerate(items):
            rr, seq = st[j]
            a.wait_ds(seq)
            for mb in range(2):
                acc = vAcc + (nb * 2 + mb) * 16
                cin = "0" if (ch == 0 and s == 0) else vr(acc, 16)
                a.e(f"v_mfma_f32_32x32x16_bf16 {vr(acc,16)}, {vr(rr,4)}, {vr(vB+buf*32+mb*16+s*4,4)}, {cin}")
            if j + PF < len(items): rd(j + PF)
    a.e("s_nop 7"); a.e("s_nop 7")
    a.e("s_barrier")
    a.e(f"s_lshl_b32 s54, s{sWv}, 14")
    a.e(f"v_lshlrev_b32 v{vt0}, 4, v{vL}")
    a.e(f"v_add_u32 v{vRed}, s54, v{vt0}")
    for qd in range(16):
        a.e(f"ds_write_b128 v{vRed}, {vr(vAcc+qd*4,4)} offset:{qd*1024}")
    a.e("s_waitcnt lgkmcnt(0)")
    a.e("s_barrier")
    a.e(f"s_lshl_b32 s54, s{sWv}, 12")
    a.e(f"v_add_u32 v{vRed}, s54, v{vt0}")
    for src in range(4):
        for qd in range(4):
            a.e(f"ds_read_b128 {vr(vB+src*16+qd*4,4)}, v{vRed} offset:{src*16384+qd*1024}")
    a.e("s_waitcnt lgkmcnt(0)")
    for i in range(16):
        a.e(f"v_add_f32 v{vB+i}, v{vB+i}, v{vB+16+i}")
        a.e(f"v_add_f32 v{vB+32+i}, v{vB+32+i}, v{vB+48+i}")
    for i in range(16):
        a.e(f"v_add_f32 v{vB+i}, v{vB+i}, v{vB+32+i}")
    a.e(f"s_and_b32 s54, s{sWv}, 1"); a.e("s_lshl_b32 s54, s54, 15")
    a.e(f"s_lshr_b32 s55, s{sWv}, 1"); a.e("s_lshl_b32 s55, s55, 6"); a.e("s_add_u32 s54, s54, s55")
    a.e(f"v_and_b32 v{vt1}, 31, v{vL}")
    a.e(f"v_lshlrev_b32 v{vt1}, 10, v{vt1}")
    a.e(f"v_lshrrev_b32 v{vt2}, 5, v{vL}")
    a.e(f"v_lshl_add_u32 v{vt1}, v{vt2}, 3, v{vt1}")
    a.e(f"v_add_u32 v{vOut}, s54, v{vt1}")
    for q4 in range(4):
        a.e(f"v_cvt_pk_bf16_f32 v{vB+64+2*q4}, v{vB+4*q4}, v{vB+4*q4+1}")
        a.e(f"v_cvt_pk_bf16_f32 v{vB+64+2*q4+1}, v{vB+4*q4+2}, v{vB+4*q4+3}")
        a.e(f"buffer_store_dwordx2 {vr(vB+64+2*q4,2)}, v{vOut}, s[{SOut}:{SOut+3}], 0 offen offset:{q4*16}")
    a.lab("L_gemm_done")
    a.e("s_endpgm")

HDR = """; Kernarg layout for this problem (64 bytes, ptrs only, base s[0:1]):
; @launch kernel=attn_kernel grid=(256,1,1) block=(512,1,1) lds=163840
; @launch kernel=oproj_kernel grid=(256,1,1) block=(256,1,1) lds=98304
.amdgcn_target "amdgcn-amd-amdhsa--gfx950"
.text
"""
def kd(name, nv, ns=64):
    return f""".amdhsa_kernel {name}
  .amdhsa_next_free_vgpr {nv}
  .amdhsa_next_free_sgpr {ns}
  .amdhsa_accum_offset {nv}
  .amdhsa_group_segment_fixed_size 0
  .amdhsa_kernarg_size 64
  .amdhsa_user_sgpr_count 2
  .amdhsa_user_sgpr_kernarg_segment_ptr 1
  .amdhsa_system_sgpr_workgroup_id_x 1
  .amdhsa_float_denorm_mode_32 3
.end_amdhsa_kernel
"""
def main():
    out = HDR
    a = A(); gen_attn(a)
    out += ".globl attn_kernel\n.p2align 8\n.type attn_kernel,@function\n" + "\n".join(a.L) + "\n"
    b = A(); gen_gemm(b)
    out += ".globl oproj_kernel\n.p2align 8\n.type oproj_kernel,@function\n" + "\n".join(b.L) + "\n"
    out += '.section .rodata,"a"\n.p2align 6\n' + kd("attn_kernel", NVG1) + ".p2align 6\n" + kd("oproj_kernel", 208)
    open(sys.argv[1] if len(sys.argv) > 1 else "standalone__gqa_block_cached__near_ridge.s", "w").write(out)
main()
```

```python
import sys, math, os

class A:
    def __init__(s):
        s.L = []
        s.ds_seq = 0
        s.ds_done = 0
    def e(s, t): s.L.append("    " + t)
    def lab(s, t): s.L.append(t + ":")
    def c(s, t): s.L.append("    ; " + t)
    def ds(s, t):
        s.e(t); s.ds_seq += 1; return s.ds_seq
    def wait_ds(s, seq):
        if seq <= s.ds_done: return
        n = s.ds_seq - seq
        n = min(n, 15)
        s.e(f"s_waitcnt lgkmcnt({n})")
        s.ds_done = s.ds_seq - n
    def ds_reset(s):
        s.ds_seq = 0; s.ds_done = 0
    def vm(s, t):
        s.e(t); s.vm_seq = getattr(s, 'vm_seq', 0) + 1; return s.vm_seq
    def wait_vm(s, seq):
        n = s.vm_seq - seq
        assert n <= 63
        s.e(f"s_waitcnt vmcnt({n})")

def vr(a, n): return f"v[{a}:{a+n-1}]"

vLane = 1; vT0 = 2; vT1 = 3; vT2 = 4; vT3 = 5
vKa = 8
vVa = 16
vWa = 20
vDK0 = 24; vDK1 = 25; vDV = 26; vDW0 = 27; vDW1 = 28; vX = 29
vM = 30; vLs = 31
vQ = 32
vO = 64
vS = [128, 160]
vP = 192
vF = 208
NF = 6
vAl = 232; vMc = 233; vOo = 234
NVG1 = 240
sB = 3; sH = 33; sW = 34
SX = 12; SK = 16; SV = 20; SWQ = 24; SO = 28
sC = 35
sTile = 36
sTileV = 37
sM0K = 38; sM0V = 39; sM0W = 40
sWqOff = 41
sLoop = 42
KRING = 0; VRING = 65536; WBUF = 131072; WBASE = VRING + 32768
SCALE = (128 ** -0.5) * math.log2(math.e)
import struct
def f32hex(x): return "0x%08x" % struct.unpack("<I", struct.pack("<f", x))[0]

def interleave(a, mfmas, valu, per=None):
    n = len(mfmas); tot = len(valu); done = 0
    for i, m in enumerate(mfmas):
        m()
        upto = (tot * (i + 1)) // n
        while done < upto:
            a.e(valu[done]); done += 1

class FragPool:
    def __init__(s): s.i = 0
    def get(s):
        r = vF + 4 * (s.i % NF); s.i += 1; return r

def dma_tile(a, srd, voff0, voff1, soff, m0sreg, slot_imm, nt=True):
    a.e(f"s_add_u32 m0, s{m0sreg}, {slot_imm}")
    a.e("s_nop 0")
    n = " nt" if nt else ""
    a.vm(f"buffer_load_dwordx4 v{voff0}, s[{srd}:{srd+3}], s{soff} offen{n} lds")
    return a.vm(f"buffer_load_dwordx4 v{voff1}, s[{srd}:{srd+3}], s{soff} offen offset:1024{n} lds")

def qk_ops(a, pool, slot, Sdst):
    items = [(kb, s) for kb in range(2) for s in range(8)]
    st = {}
    def rd(j):
        kb, s = items[j]
        r = pool.get()
        seq = a.ds(f"ds_read_b128 {vr(r,4)}, v{vKa+s} offset:{KRING+slot*16384+kb*8192}")
        st[j] = (r, seq)
    PF = NF - 1
    ops = []
    def mk(j):
        def f():
            if j == 0:
                for x in range(PF): rd(x)
            if j + PF < len(items) and j > 0: rd(j + PF - 1 + 0) if False else None
            kb, s = items[j]
            r, seq = st[j]
            a.wait_ds(seq)
            acc = Sdst + kb * 16
            cin = "0" if s == 0 else vr(acc, 16)
            a.e(f"v_mfma_f32_32x32x16_bf16 {vr(acc,16)}, {vr(r,4)}, {vr(vQ+4*s,4)}, {cin}")
            if j + PF < len(items): rd(j + PF)
        return f
    return [mk(j) for j in range(len(items))]

def pv_ops(a, pool, slot):
    items = [(db, kb, u) for db in range(4) for kb in range(2) for u in range(2)]
    st = {}
    def rd(j):
        db, kb, u = items[j]
        r = pool.get()
        base = slot * 16384 + (32 * kb + 16 * u) * 256
        a.ds(f"ds_read_b64_tr_b16 {vr(r,2)}, v{vVa+db} offset:{base}")
        seq = a.ds(f"ds_read_b64_tr_b16 {vr(r+2,2)}, v{vVa+db} offset:{base+2048}")
        st[j] = (r, seq)
    PF = NF - 1
    def mk(j):
        def f():
            if j == 0:
                for x in range(PF): rd(x)
            db, kb, u = items[j]
            r, seq = st[j]
            a.wait_ds(seq)
            acc = vO + db * 16
            a.e(f"v_mfma_f32_32x32x16_bf16 {vr(acc,16)}, {vr(r,4)}, {vr(vP+(kb*2+u)*4,4)}, {vr(acc,16)}")
            if j + PF < len(items): rd(j + PF)
        return f
    return [mk(j) for j in range(len(items))]

def softmax_part1(S):
    v = []
    vals = [S + i for i in range(32)]
    v.append(f"v_max3_f32 v{vT0}, v{S+0}, v{S+1}, v{S+2}")
    v.append(f"v_max3_f32 v{vT1}, v{S+3}, v{S+4}, v{S+5}")
    v.append(f"v_max3_f32 v{vT2}, v{S+6}, v{S+7}, v{S+8}")
    v.append(f"v_max3_f32 v{vT3}, v{S+9}, v{S+10}, v{S+11}")
    k = 12; t = 0
    T = [vT0, vT1, vT2, vT3]
    while k < 32:
        v.append(f"v_max3_f32 v{T[t]}, v{T[t]}, v{S+k}, v{S+k+1}")
        k += 2; t = (t + 1) % 4
    v.append(f"v_max3_f32 v{vT0}, v{vT0}, v{vT1}, v{vT2}")
    v.append(f"v_max_f32 v{vT0}, v{vT0}, v{vT3}")
    v.append(f"v_mov_b32 v{vT1}, v{vT0}")
    v.append("s_nop 1")
    v.append(f"v_permlane32_swap_b32 v{vT0}, v{vT1}")
    v.append(f"v_max3_f32 v{vT0}, v{vT0}, v{vT1}, v{vM}")
    v.append(f"v_sub_f32 v{vT1}, v{vM}, v{vT0}")
    v.append(f"v_mul_f32 v{vMc}, s{sC}, v{vT0}")
    v.append(f"v_mul_f32 v{vT1}, s{sC}, v{vT1}")
    v.append(f"v_mov_b32 v{vM}, v{vT0}")
    v.append(f"v_exp_f32 v{vAl}, v{vT1}")
    for i in range(32 + 2):
        if i < 32: v.append(f"v_fma_f32 v{S+i}, v{S+i}, s{sC}, -v{vMc}")
        if i == 1: v.append(f"v_mul_f32 v{vLs}, v{vLs}, v{vAl}")
        if 0 <= i - 1 < 32: v.append(f"v_exp_f32 v{S+i-1}, v{S+i-1}")
        if 0 <= i - 2 < 32: v.append(f"v_add_f32 v{vLs}, v{vLs}, v{S+i-2}")
    return v

def softmax_part2(S, rescale=True):
    v = []
    for j in range(16):
        v.append(f"v_cvt_pk_bf16_f32 v{vP+j}, v{S+2*j}, v{S+2*j+1}")
    if rescale:
        for i in range(64):
            v.append(f"v_mul_f32 v{vO+i}, v{vO+i}, v{vAl}")
    return v

def attn_iter(a, pool, t, do_pv, do_qk):
    a.c(f"---- iteration t%4={t%4} pv={do_pv} qk={do_qk}")
    a.e("s_waitcnt vmcnt(8)")
    a.e("s_barrier")
    dma_tile(a, SK, vDK0, vDK1, sTile, sM0K, (t % 4) * 16384)
    dma_tile(a, SV, vDV, vDV, sTileV, sM0V, ((t + 2) % 4) * 16384)
    a.e(f"s_add_u32 s{sTile}, s{sTile}, 16384")
    a.e(f"s_add_u32 s{sTileV}, s{sTileV}, 16384")
    S = vS[t % 2]
    p1 = softmax_part1(S); p2 = softmax_part2(S)
    if do_pv:
        interleave(a, pv_ops(a, pool, (t - 1) % 4), p1)
    else:
        for x in p1: a.e(x)
    if do_qk:
        interleave(a, qk_ops(a, pool, (t + 1) % 4, vS[(t + 1) % 2]), p2)
    else:
        a.e("s_nop 7"); a.e("s_nop 7")
        for x in p2: a.e(x)

STAMP = os.environ.get("STAMP")
stamp_n = [0]
def stamp(a):
    if not STAMP: return
    i = stamp_n[0]; stamp_n[0] += 1
    a.e(f"s_memtime s[{64+2*i}:{65+2*i}]"); a.e("s_waitcnt lgkmcnt(0)")
def stamp_store(a):
    if not STAMP: return
    a.e("s_load_dwordx2 s[56:57], s[0:1], 48"); a.e("s_waitcnt lgkmcnt(0)")
    a.e("s_mov_b32 s58, 256"); a.e("s_mov_b32 s59, 0x00020000")
    a.e("s_cmp_lg_u32 s2, 0"); a.e("s_cbranch_scc1 L_nostamp")
    a.e(f"s_cmp_lg_u32 s{sW}, 0"); a.e("s_cbranch_scc1 L_nostamp")
    a.e("v_mov_b32 v2, 0")
    for i in range(stamp_n[0]):
        a.e(f"v_mov_b32 v3, s{64+2*i}")
        a.e(f"buffer_store_dword v3, v2, s[56:59], 0 offen offset:{4*i}")
    a.lab("L_nostamp")

def gen_attn(a):
    a.lab("attn_kernel")
    a.e("s_cmp_ge_u32 s2, 256")
    a.e("s_cbranch_scc1 L_attn_done")
    stamp(a)
    a.e("s_load_dwordx4 s[44:47], s[0:1], 0")
    a.e("s_load_dwordx4 s[48:51], s[0:1], 16")
    a.e("s_load_dwordx2 s[52:53], s[0:1], 56")
    a.e(f"s_lshr_b32 s{sB}, s2, 5")
    a.e(f"s_and_b32 s{sH}, s2, 31")
    a.e(f"v_lshrrev_b32 v{vT0}, 6, v0")
    a.e(f"v_and_b32 v{vLane}, 63, v0")
    a.e("s_nop 0")
    a.e(f"v_readfirstlane_b32 s{sW}, v{vT0}")
    a.e("s_waitcnt lgkmcnt(0)")
    a.e(f"s_lshl_b32 s54, s{sB}, 18")
    a.e(f"s_add_u32 s{SX}, s44, s54"); a.e(f"s_addc_u32 s{SX+1}, s45, 0")
    a.e(f"s_mov_b32 s{SX+2}, 262144"); a.e(f"s_mov_b32 s{SX+3}, 0x00020000")
    a.e("s_lshl_b32 s54, s2, 18")
    a.e(f"s_add_u32 s{SK}, s46, s54"); a.e(f"s_addc_u32 s{SK+1}, s47, 0")
    a.e(f"s_mov_b32 s{SK+2}, 262144"); a.e(f"s_mov_b32 s{SK+3}, 0x00020000")
    a.e(f"s_add_u32 s{SV}, s48, s54"); a.e(f"s_addc_u32 s{SV+1}, s49, 0")
    a.e(f"s_mov_b32 s{SV+2}, 262144"); a.e(f"s_mov_b32 s{SV+3}, 0x00020000")
    a.e(f"s_lshl_b32 s54, s{sH}, 8")
    a.e(f"s_add_u32 s{SWQ}, s50, s54"); a.e(f"s_addc_u32 s{SWQ+1}, s51, 0")
    a.e(f"s_sub_u32 s{SWQ+2}, 4194304, s54"); a.e(f"s_mov_b32 s{SWQ+3}, 0x00020000")
    a.e(f"s_lshl_b32 s54, s{sB}, 21"); a.e(f"s_lshl_b32 s55, s{sH}, 13"); a.e("s_add_u32 s54, s54, s55")
    a.e(f"s_add_u32 s{SO}, s52, s54"); a.e(f"s_addc_u32 s{SO+1}, s53, 0")
    a.e(f"s_sub_u32 s{SO+2}, 16777216, s54"); a.e(f"s_mov_b32 s{SO+3}, 0x00020000")
    a.e(f"s_mov_b32 s{sC}, {f32hex(SCALE)}")
    q, hh, g, r, c4 = 40, 41, 42, 43, 44
    t5, t6, t7 = 45, 46, 47
    a.e(f"v_and_b32 v{q}, 31, v{vLane}")
    a.e(f"v_lshrrev_b32 v{hh}, 5, v{vLane}")
    a.e(f"v_lshrrev_b32 v{g}, 4, v{vLane}")
    a.e(f"v_bfe_u32 v{r}, v{vLane}, 2, 2")
    a.e(f"v_and_b32 v{c4}, 3, v{vLane}")
    a.e(f"v_and_b32 v{t5}, 15, v{q}")
    a.e(f"v_xor_b32 v{t5}, v{t5}, v{hh}")
    for s in range(8):
        a.e(f"v_xor_b32 v{t6}, {2*s}, v{t5}")
        a.e(f"v_lshlrev_b32 v{t6}, 4, v{t6}")
        a.e(f"v_lshl_add_u32 v{vKa+s}, v{q}, 8, v{t6}")
    a.e(f"v_lshrrev_b32 v{t5}, 1, v{g}")
    a.e(f"v_lshl_add_u32 v{t6}, v{t5}, 2, v{r}")
    a.e(f"v_lshlrev_b32 v{t6}, 8, v{t6}")
    a.e(f"v_and_b32 v{t7}, 1, v{g}")
    a.e(f"v_lshl_add_u32 v{t6}, v{t7}, 5, v{t6}")
    a.e(f"v_lshl_add_u32 v{t6}, v{c4}, 3, v{t6}")
    a.e(f"v_add_u32 v{t6}, {VRING}, v{t6}")
    for db in range(4):
        a.e(f"v_xor_b32 v{t7}, {db}, v{r}")
        a.e(f"v_lshl_add_u32 v{vVa+db}, v{t7}, 6, v{t6}")
    a.e(f"v_lshl_add_u32 v{t6}, v{t5}, 3, v{r}")
    a.e(f"v_lshlrev_b32 v{t6}, 8, v{t6}")
    a.e(f"v_and_b32 v{t7}, 1, v{g}")
    a.e(f"v_lshl_add_u32 v{t6}, v{t7}, 5, v{t6}")
    a.e(f"v_and_b32 v{t7}, 1, v{c4}")
    a.e(f"v_lshl_add_u32 v{t6}, v{t7}, 4, v{t6}")
    a.e(f"v_lshrrev_b32 v{t7}, 1, v{c4}")
    a.e(f"v_lshl_add_u32 v{t6}, v{t7}, 3, v{t6}")
    a.e(f"v_add_u32 v{t6}, {WBASE}, v{t6}")
    for db in range(4):
        a.e(f"v_xor_b32 v{t7}, {db}, v{r}")
        a.e(f"v_lshl_add_u32 v{vWa+db}, v{t7}, 6, v{t6}")
    a.e(f"s_lshl_b32 s54, s{sW}, 3")
    a.e(f"v_add_u32 v{t5}, s54, v{g}")
    a.e(f"v_and_b32 v{t6}, 15, v{vLane}")
    a.e(f"v_and_b32 v{t7}, 15, v{t5}")
    a.e(f"v_xor_b32 v{t7}, v{t7}, v{t6}")
    a.e(f"v_lshlrev_b32 v{t7}, 4, v{t7}")
    a.e(f"v_lshl_add_u32 v{vDK0}, v{t5}, 8, v{t7}")
    a.e(f"v_add_u32 v{t7}, 4, v{t5}")
    a.e(f"v_and_b32 v{t7}, 15, v{t7}")
    a.e(f"v_xor_b32 v{t7}, v{t7}, v{t6}")
    a.e(f"v_lshlrev_b32 v{t7}, 4, v{t7}")
    a.e(f"v_lshl_add_u32 v{vDK1}, v{t5}, 8, v{t7}")
    a.e(f"v_and_b32 v{t7}, 3, v{t5}")
    a.e(f"v_lshlrev_b32 v{t7}, 2, v{t7}")
    a.e(f"v_xor_b32 v{t7}, v{t7}, v{t6}")
    a.e(f"v_lshlrev_b32 v{t7}, 4, v{t7}")
    a.e(f"v_lshl_add_u32 v{vDV}, v{t5}, 8, v{t7}")
    a.e(f"v_lshl_add_u32 v{vDW0}, v{t5}, 13, v{t7}")
    a.e(f"v_add_u32 v{vDW1}, 31744, v{vDW0}")
    a.e(f"s_lshl_b32 s54, s{sW}, 5")
    a.e(f"v_add_u32 v{t5}, s54, v{q}")
    a.e(f"v_lshlrev_b32 v{t5}, 10, v{t5}")
    a.e(f"v_lshl_add_u32 v{vX}, v{hh}, 4, v{t5}")
    a.e(f"s_lshl_b32 s54, s{sW}, 18")
    a.e(f"v_lshlrev_b32 v{t5}, 4, v{vLane}")
    a.e(f"v_add_u32 v{vOo}, s54, v{t5}")
    a.e(f"s_lshl_b32 s54, s{sW}, 11")
    a.e(f"s_add_u32 s{sM0K}, s54, {KRING}")
    a.e(f"s_add_u32 s{sM0V}, s54, {VRING}")
    a.e(f"s_add_u32 s{sM0W}, s54, {WBASE}")
    a.e(f"s_mov_b32 s{sTile}, 0"); a.e(f"s_mov_b32 s{sTileV}, 0"); a.e(f"s_mov_b32 s{sWqOff}, 0")
    WSLOT = [VRING + 3 * 16384, WBUF, WBUF + 16384]
    XBUF = [KRING + 2 * 16384, VRING + 1 * 16384]
    vXd = 48
    vXa = 52
    vXf = vO
    sXoff = 43
    a.e(f"v_and_b32 v{t6}, 15, v{vLane}")
    a.e(f"v_xor_b32 v{t6}, v{t6}, v{g}")
    a.e(f"s_lshl_b32 s54, s{sW}, 15")
    for i in range(4):
        a.e(f"v_xor_b32 v{t7}, {4*i}, v{t6}")
        a.e(f"v_lshrrev_b32 v{t5}, 3, v{t7}")
        a.e(f"v_lshl_add_u32 v{t5}, v{g}, 1, v{t5}")
        a.e(f"v_lshlrev_b32 v{t5}, 10, v{t5}")
        a.e(f"v_and_b32 v{t7}, 7, v{t7}")
        a.e(f"v_lshl_add_u32 v{t5}, v{t7}, 4, v{t5}")
        a.e(f"v_add_u32 v{t5}, {8192*i - 1024*i}, v{t5}")
        a.e(f"v_add_u32 v{vXd+i}, s54, v{t5}")
    a.e(f"v_lshrrev_b32 v{t5}, 1, v{q}")
    a.e(f"v_and_b32 v{t6}, 1, v{q}")
    a.e(f"v_lshl_add_u32 v{t6}, v{t6}, 3, v{hh}")
    a.e(f"v_xor_b32 v{t6}, v{t6}, v{t5}")
    a.e(f"s_lshl_b32 s54, s{sW}, 12")
    a.e(f"v_lshlrev_b32 v{t5}, 8, v{t5}")
    a.e(f"v_add_u32 v{t5}, s54, v{t5}")
    a.e(f"v_add_u32 v{t5}, 32768, v{t5}")
    for s_ in range(4):
        a.e(f"v_xor_b32 v{t7}, {2*s_}, v{t6}")
        a.e(f"v_lshl_add_u32 v{vXa+s_}, v{t7}, 4, v{t5}")
    a.e(f"s_mov_b32 s{sXoff}, 0")
    a.e(f"s_mov_b32 s63, s54")
    def xload(c):
        a.e(f"s_add_u32 m0, s63, {XBUF[c%2]}")
        a.e("s_nop 0")
        for i in range(4):
            sq = a.vm(f"buffer_load_dwordx4 v{vXd+i}, s[{SX}:{SX+3}], s{sXoff} offen offset:{i*1024} lds")
        a.e(f"s_add_u32 s{sXoff}, s{sXoff}, 128")
        return sq
    def wload(c):
        sq = dma_tile(a, SWQ, vDW0, vDW1, sWqOff, sM0W, WSLOT[c % 3] - WBASE, nt=False)
        a.e(f"s_add_u32 s{sWqOff}, s{sWqOff}, 524288")
        return sq
    def kpart(slot):
        sq = dma_tile(a, SK, vDK0, vDK1, sTile, sM0K, slot * 16384); a.e(f"s_add_u32 s{sTile}, s{sTile}, 16384"); return sq
    def vpart(slot):
        sq = dma_tile(a, SV, vDV, vDV, sTileV, sM0V, slot * 16384); a.e(f"s_add_u32 s{sTileV}, s{sTileV}, 16384"); return sq
    kvparts = {1: lambda: kpart(0), 3: lambda: kpart(1), 5: lambda: vpart(0), 7: lambda: kpart(2)}
    xs = {}
    for c in range(2):
        wload(c); xs[c] = xload(c)
    pool = FragPool()
    QA = vS[0]
    kvseq = {}
    for c in range(8):
        a.c(f"-- qproj chunk {c}")
        a.wait_vm(xs[c])
        a.e("s_barrier")
        for s_ in range(4):
            xq = a.ds(f"ds_read_b128 {vr(vXf+4*s_,4)}, v{vXa+s_} offset:{XBUF[c%2]-KRING-32768}")
        items = [(s, db) for s in range(4) for db in range(4)]
        st = {}
        def rd(j):
            s, db = items[j]
            rr = pool.get()
            base = (WSLOT[c % 3] - WBASE) + s * 4096
            a.ds(f"ds_read_b64_tr_b16 {vr(rr,2)}, v{vWa+db} offset:{base}")
            seq = a.ds(f"ds_read_b64_tr_b16 {vr(rr+2,2)}, v{vWa+db} offset:{base+1024}")
            st[j] = (rr, seq)
        PF = NF - 1
        for x in range(PF): rd(x)
        a.wait_ds(xq)
        if c + 2 < 8: wload(c + 2); xs[c + 2] = xload(c + 2)
        if c in kvparts: kvseq[c] = kvparts[c]()
        for j, (s, db) in enumerate(items):
            rr, seq = st[j]
            a.wait_ds(seq)
            acc = QA + db * 16
            cin = "0" if (c == 0 and s == 0) else vr(acc, 16)
            a.e(f"v_mfma_f32_32x32x16_bf16 {vr(acc,16)}, {vr(rr,4)}, {vr(vXf+4*s,4)}, {cin}")
            if j + PF < len(items): rd(j + PF)
    stamp(a)
    a.e("s_nop 7"); a.e("s_nop 7")
    for db in range(4):
        for j in range(8):
            a.e(f"v_cvt_pk_bf16_f32 v{vQ+db*8+j}, v{QA+db*16+2*j}, v{QA+db*16+2*j+1}")
    for i in range(64): a.e(f"v_mov_b32 v{vO+i}, 0")
    a.e(f"v_mov_b32 v{vM}, 0xff800000")
    a.e(f"v_mov_b32 v{vLs}, 0")
    a.wait_vm(kvseq[1])
    a.e("s_barrier")
    vpart(1); kpart(3)
    for m in qk_ops(a, pool, 0, vS[0]): m()
    stamp(a)
    attn_iter(a, pool, 0, False, True)
    stamp(a)
    a.e(f"s_mov_b32 s{sLoop}, 0")
    a.lab("L_attn_loop")
    a.ds_reset()
    for t in (1, 2, 3, 4):
        attn_iter(a, pool, t, True, True)
    a.e(f"s_add_u32 s{sLoop}, s{sLoop}, 1")
    a.e(f"s_cmp_lt_u32 s{sLoop}, 3")
    a.e("s_cbranch_scc1 L_attn_loop")
    a.ds_reset()
    stamp(a)
    attn_iter(a, pool, 13, True, True)
    attn_iter(a, pool, 14, True, True)
    attn_iter(a, pool, 15, True, False)
    for m in pv_ops(a, pool, 15 % 4): m()
    stamp(a)
    a.e(f"v_mov_b32 v{vT1}, v{vLs}")
    a.e("s_nop 1")
    a.e(f"v_permlane32_swap_b32 v{vLs}, v{vT1}")
    a.e(f"v_add_f32 v{vLs}, v{vLs}, v{vT1}")
    a.e(f"v_rcp_f32 v{vAl}, v{vLs}")
    a.e("s_nop 7"); a.e("s_nop 7")
    a.e("s_mov_b32 s54, 4096")
    for db in range(4):
        for u in range(2):
            base = vO + db * 16 + 8 * u
            for j in range(8):
                a.e(f"v_mul_f32 v{base+j}, v{base+j}, v{vAl}")
            dst = vP + (db * 2 + u) % 4 * 4
            for j in range(4):
                a.e(f"v_cvt_pk_bf16_f32 v{dst+j}, v{base+2*j}, v{base+2*j+1}")
            idx = db * 2 + u
            so = "0" if idx < 4 else "s54"
            a.e(f"buffer_store_dwordx4 {vr(dst,4)}, v{vOo}, s[{SO}:{SO+3}], {so} offen offset:{(idx%4)*1024}")
    a.e("s_waitcnt vmcnt(0)")
    stamp(a)
    stamp_store(a)
    a.lab("L_attn_done")
    a.e("s_endpgm")

def gen_gemm(a):
    a.lab("oproj_kernel")
    vL = 1; vBo0 = 2; vBo1 = 3; vD = 4; vA0 = 5; vA1 = 6; vt0 = 7; vt1 = 8; vt2 = 9; vRed = 10; vOut = 11
    vB = 16
    vAcc = 112
    vFr = 176
    NFR = 8
    SOf = 12; SWo = 16; SOut = 20
    sWv = 34; sCh = 36; sWoOff = 37; sTmp = 38
    a.e("s_cmp_ge_u32 s2, 256")
    a.e("s_cbranch_scc1 L_gemm_done")
    a.e("s_load_dwordx4 s[44:47], s[0:1], 32")
    a.e("s_load_dwordx2 s[52:53], s[0:1], 56")
    a.e("s_lshr_b32 s3, s2, 6"); a.e("s_lshl_b32 s3, s3, 3"); a.e("s_and_b32 s33, s2, 7"); a.e("s_add_u32 s3, s3, s33")
    a.e("s_bfe_u32 s33, s2, 0x30003")
    a.e(f"v_lshrrev_b32 v{vt0}, 6, v0")
    a.e(f"v_and_b32 v{vL}, 63, v0")
    a.e("s_nop 0")
    a.e(f"v_readfirstlane_b32 s{sWv}, v{vt0}")
    a.e("s_waitcnt lgkmcnt(0)")
    a.e("s_lshl_b32 s54, s3, 19"); a.e(f"s_lshl_b32 s55, s{sWv}, 16"); a.e("s_add_u32 s54, s54, s55")
    a.e(f"s_add_u32 s{SOf}, s52, s54"); a.e(f"s_addc_u32 s{SOf+1}, s53, 0")
    a.e(f"s_sub_u32 s{SOf+2}, 16777216, s54"); a.e(f"s_mov_b32 s{SOf+3}, 0x00020000")
    a.e(f"s_lshl_b32 s54, s{sWv}, 20"); a.e("s_lshl_b32 s55, s33, 7"); a.e("s_add_u32 s54, s54, s55")
    a.e(f"s_add_u32 s{SWo}, s44, s54"); a.e(f"s_addc_u32 s{SWo+1}, s45, 0")
    a.e(f"s_sub_u32 s{SWo+2}, 4194304, s54"); a.e(f"s_mov_b32 s{SWo+3}, 0x00020000")
    a.e("s_lshl_b32 s54, s3, 16"); a.e("s_add_u32 s54, s54, s55")
    a.e(f"s_add_u32 s{SOut}, s46, s54"); a.e(f"s_addc_u32 s{SOut+1}, s47, 0")
    a.e(f"s_sub_u32 s{SOut+2}, 2097152, s54"); a.e(f"s_mov_b32 s{SOut+3}, 0x00020000")
    a.e(f"v_lshlrev_b32 v{vBo0}, 4, v{vL}")
    a.e(f"v_add_u32 v{vBo1}, 262144, v{vBo0}")
    a.e(f"v_lshrrev_b32 v{vt0}, 3, v{vL}")
    a.e(f"v_and_b32 v{vt1}, 7, v{vL}")
    a.e(f"v_bfe_u32 v{vt2}, v{vL}, 4, 1")
    a.e(f"v_lshlrev_b32 v{vt2}, 2, v{vt2}")
    a.e(f"v_xor_b32 v{vt1}, v{vt1}, v{vt2}")
    a.e(f"v_lshlrev_b32 v{vt1}, 4, v{vt1}")
    a.e(f"v_lshl_add_u32 v{vD}, v{vt0}, 10, v{vt1}")
    a.e(f"v_lshrrev_b32 v{vt0}, 5, v{vL}")
    a.e(f"v_bfe_u32 v{vt1}, v{vL}, 2, 2")
    a.e(f"v_lshl_add_u32 v{vt0}, v{vt0}, 2, v{vt1}")
    a.e(f"v_lshlrev_b32 v{vt0}, 7, v{vt0}")
    a.e(f"v_bfe_u32 v{vt2}, v{vL}, 4, 1")
    a.e(f"v_lshl_add_u32 v{vt0}, v{vt2}, 5, v{vt0}")
    a.e(f"v_and_b32 v{vt2}, 3, v{vL}")
    a.e(f"v_lshl_add_u32 v{vt0}, v{vt2}, 3, v{vt0}")
    a.e(f"s_mul_i32 s54, s{sWv}, 24576")
    a.e(f"v_add_u32 v{vt0}, s54, v{vt0}")
    a.e(f"v_lshrrev_b32 v{vt1}, 1, v{vt1}")
    a.e(f"v_lshl_add_u32 v{vA0}, v{vt1}, 6, v{vt0}")
    a.e(f"v_xor_b32 v{vt1}, 1, v{vt1}")
    a.e(f"v_lshl_add_u32 v{vA1}, v{vt1}, 6, v{vt0}")
    a.e(f"s_mov_b32 s{sCh}, 0"); a.e(f"s_mov_b32 s{sWoOff}, 0")
    a.e(f"s_mov_b32 s39, s54")
    def load_chunk(buf):
        for mb in range(2):
            for s in range(4):
                if os.environ.get("NOB"): continue
                a.e(f"buffer_load_dwordx4 {vr(vB+buf*32+mb*16+s*4,4)}, v{vBo0 if mb==0 else vBo1}, s[{SOf}:{SOf+3}], s{sCh} offen offset:{s*1024}")
        a.e(f"s_add_u32 s{sCh}, s{sCh}, 4096")
        for i in range(8):
            a.e(f"s_add_u32 m0, s39, {buf*8192+i*1024}")
            a.e(f"s_add_u32 s{sTmp}, s{sWoOff}, {i*8192}")
            if not os.environ.get("NOA"): a.e(f"buffer_load_dwordx4 v{vD}, s[{SWo}:{SWo+3}], s{sTmp} offen lds")
        a.e(f"s_add_u32 s{sWoOff}, s{sWoOff}, 65536")
    load_chunk(0); load_chunk(1)
    pi = [0]
    def getf():
        r = vFr + 4 * (pi[0] % NFR); pi[0] += 1; return r
    for ch in range(16):
        buf = ch % 3
        a.c(f"-- chunk {ch}")
        if ch + 2 < 16:
            load_chunk((ch + 2) % 3)
            a.e("s_waitcnt vmcnt(32)")
        elif ch + 1 < 16:
            a.e("s_waitcnt vmcnt(16)")
        else:
            a.e("s_waitcnt vmcnt(0)")
        items = [(s, nb) for s in range(4) for nb in range(2)]
        st = {}
        def rd(j):
            s, nb = items[j]
            rr = getf()
            base = buf * 8192 + 16 * s * 128
            a.ds(f"ds_read_b64_tr_b16 {vr(rr,2)}, v{vA0 if nb==0 else vA1} offset:{base}")
            seq = a.ds(f"ds_read_b64_tr_b16 {vr(rr+2,2)}, v{vA0 if nb==0 else vA1} offset:{base+1024}")
            st[j] = (rr, seq)
        PF = 4
        for x in range(PF): rd(x)
        for j, (s, nb) in enumerate(items):
            rr, seq = st[j]
            a.wait_ds(seq)
            for mb in range(2):
                acc = vAcc + (nb * 2 + mb) * 16
                cin = "0" if (ch == 0 and s == 0) else vr(acc, 16)
                a.e(f"v_mfma_f32_32x32x16_bf16 {vr(acc,16)}, {vr(rr,4)}, {vr(vB+buf*32+mb*16+s*4,4)}, {cin}")
            if j + PF < len(items): rd(j + PF)
    a.e("s_nop 7"); a.e("s_nop 7")
    a.e("s_barrier")
    a.e(f"s_lshl_b32 s54, s{sWv}, 14")
    a.e(f"v_lshlrev_b32 v{vt0}, 4, v{vL}")
    a.e(f"v_add_u32 v{vRed}, s54, v{vt0}")
    for qd in range(16):
        a.e(f"ds_write_b128 v{vRed}, {vr(vAcc+qd*4,4)} offset:{qd*1024}")
    a.e("s_waitcnt lgkmcnt(0)")
    a.e("s_barrier")
    a.e(f"s_lshl_b32 s54, s{sWv}, 12")
    a.e(f"v_add_u32 v{vRed}, s54, v{vt0}")
    for src in range(4):
        for qd in range(4):
            a.e(f"ds_read_b128 {vr(vB+src*16+qd*4,4)}, v{vRed} offset:{src*16384+qd*1024}")
    a.e("s_waitcnt lgkmcnt(0)")
    for i in range(16):
        a.e(f"v_add_f32 v{vB+i}, v{vB+i}, v{vB+16+i}")
        a.e(f"v_add_f32 v{vB+32+i}, v{vB+32+i}, v{vB+48+i}")
    for i in range(16):
        a.e(f"v_add_f32 v{vB+i}, v{vB+i}, v{vB+32+i}")
    a.e(f"s_and_b32 s54, s{sWv}, 1"); a.e("s_lshl_b32 s54, s54, 15")
    a.e(f"s_lshr_b32 s55, s{sWv}, 1"); a.e("s_lshl_b32 s55, s55, 6"); a.e("s_add_u32 s54, s54, s55")
    a.e(f"v_and_b32 v{vt1}, 31, v{vL}")
    a.e(f"v_lshlrev_b32 v{vt1}, 10, v{vt1}")
    a.e(f"v_lshrrev_b32 v{vt2}, 5, v{vL}")
    a.e(f"v_lshl_add_u32 v{vt1}, v{vt2}, 3, v{vt1}")
    a.e(f"v_add_u32 v{vOut}, s54, v{vt1}")
    for q4 in range(4):
        a.e(f"v_cvt_pk_bf16_f32 v{vB+64+2*q4}, v{vB+4*q4}, v{vB+4*q4+1}")
        a.e(f"v_cvt_pk_bf16_f32 v{vB+64+2*q4+1}, v{vB+4*q4+2}, v{vB+4*q4+3}")
        a.e(f"buffer_store_dwordx2 {vr(vB+64+2*q4,2)}, v{vOut}, s[{SOut}:{SOut+3}], 0 offen offset:{q4*16}")
    a.lab("L_gemm_done")
    a.e("s_endpgm")

HDR = """; Kernarg layout for this problem (64 bytes, ptrs only, base s[0:1]):
; @launch kernel=attn_kernel grid=(256,1,1) block=(512,1,1) lds=163840
; @launch kernel=oproj_kernel grid=(256,1,1) block=(256,1,1) lds=98304
.amdgcn_target "amdgcn-amd-amdhsa--gfx950"
.text
"""
def kd(name, nv, ns=100):
    return f""".amdhsa_kernel {name}
  .amdhsa_next_free_vgpr {nv}
  .amdhsa_next_free_sgpr {ns}
  .amdhsa_accum_offset {nv}
  .amdhsa_group_segment_fixed_size 0
  .amdhsa_kernarg_size 64
  .amdhsa_user_sgpr_count 2
  .amdhsa_user_sgpr_kernarg_segment_ptr 1
  .amdhsa_system_sgpr_workgroup_id_x 1
  .amdhsa_float_denorm_mode_32 3
.end_amdhsa_kernel
"""
def main():
    out = HDR
    a = A(); gen_attn(a)
    out += ".globl attn_kernel\n.p2align 8\n.type attn_kernel,@function\n" + "\n".join(a.L) + "\n"
    b = A(); gen_gemm(b)
    out += ".globl oproj_kernel\n.p2align 8\n.type oproj_kernel,@function\n" + "\n".join(b.L) + "\n"
    out += '.section .rodata,"a"\n.p2align 6\n' + kd("attn_kernel", NVG1) + ".p2align 6\n" + kd("oproj_kernel", 208)
    open(sys.argv[1] if len(sys.argv) > 1 else "standalone__gqa_block_cached__near_ridge.s", "w").write(out)
main()
```

```python
import sys, math, os

class A:
    def __init__(s):
        s.L = []
        s.ds_seq = 0
        s.ds_done = 0
    def e(s, t): s.L.append("    " + t)
    def lab(s, t): s.L.append(t + ":")
    def c(s, t): s.L.append("    ; " + t)
    def ds(s, t):
        s.e(t); s.ds_seq += 1; return s.ds_seq
    def wait_ds(s, seq):
        if seq <= s.ds_done: return
        n = s.ds_seq - seq
        n = min(n, 15)
        s.e(f"s_waitcnt lgkmcnt({n})")
        s.ds_done = s.ds_seq - n
    def ds_reset(s):
        s.ds_seq = 0; s.ds_done = 0
    def vm(s, t):
        s.e(t); s.vm_seq = getattr(s, 'vm_seq', 0) + 1; return s.vm_seq
    def wait_vm(s, seq):
        n = s.vm_seq - seq
        assert n <= 63
        s.e(f"s_waitcnt vmcnt({n})")

def vr(a, n): return f"v[{a}:{a+n-1}]"

vLane = 1; vT0 = 2; vT1 = 3; vT2 = 4; vT3 = 5
vKa = 8
vVa = 16
vWa = 20
vDK0 = 24; vDK1 = 25; vDV = 26; vDW0 = 27; vDW1 = 28; vX = 29
vM = 30; vLs = 31
vQ = 32
vO = 64
vS = [128, 160]
vP = 192
vF = 208
NF = 6
vAl = 232; vMc = 233; vOo = 234; vVb = 235
NVG1 = 240
sB = 3; sH = 33; sW = 34
SX = 12; SK = 16; SV = 20; SWQ = 24; SO = 28
sC = 35
sTile = 36
sTileV = 37
sM0K = 38; sM0V = 39; sM0W = 40
sWqOff = 41
sLoop = 42
KRING = 0; VRING = 65536; WBUF = 131072; WBASE = VRING + 32768
SCALE = (128 ** -0.5) * math.log2(math.e)
import struct
def f32hex(x): return "0x%08x" % struct.unpack("<I", struct.pack("<f", x))[0]

def interleave(a, mfmas, valu, per=None):
    n = len(mfmas); tot = len(valu); done = 0
    for i, m in enumerate(mfmas):
        m()
        upto = (tot * (i + 1)) // n
        while done < upto:
            a.e(valu[done]); done += 1

class FragPool:
    def __init__(s): s.i = 0
    def get(s):
        r = vF + 4 * (s.i % NF); s.i += 1; return r

def dma_tile(a, srd, voff0, voff1, soff, m0sreg, slot_imm, nt=True):
    a.e(f"s_add_u32 m0, s{m0sreg}, {slot_imm}")
    a.e("s_nop 0")
    n = " nt" if nt else ""
    a.vm(f"buffer_load_dwordx4 v{voff0}, s[{srd}:{srd+3}], s{soff} offen{n} lds")
    return a.vm(f"buffer_load_dwordx4 v{voff1}, s[{srd}:{srd+3}], s{soff} offen offset:1024{n} lds")

def qk_ops(a, pool, slot, Sdst):
    items = [(kb, s) for kb in range(2) for s in range(8)]
    st = {}
    def rd(j):
        kb, s = items[j]
        r = pool.get()
        seq = a.ds(f"ds_read_b128 {vr(r,4)}, v{vKa+s} offset:{KRING+slot*16384+kb*8192}")
        st[j] = (r, seq)
    PF = NF - 1
    ops = []
    def mk(j):
        def f():
            if j == 0:
                for x in range(PF): rd(x)
            if j + PF < len(items) and j > 0: rd(j + PF - 1 + 0) if False else None
            kb, s = items[j]
            r, seq = st[j]
            a.wait_ds(seq)
            acc = Sdst + kb * 16
            cin = "0" if s == 0 else vr(acc, 16)
            a.e(f"v_mfma_f32_32x32x16_bf16 {vr(acc,16)}, {vr(r,4)}, {vr(vQ+4*s,4)}, {cin}")
            if j + PF < len(items): rd(j + PF)
        return f
    return [mk(j) for j in range(len(items))]

def pv_ops(a, pool, slot):
    items = [(db, kb, u) for db in range(4) for kb in range(2) for u in range(2)]
    st = {}
    def rd(j):
        db, kb, u = items[j]
        r = pool.get()
        base = slot * 16384 + (32 * kb + 16 * u) * 256
        a.ds(f"ds_read_b64_tr_b16 {vr(r,2)}, v{vVa+db} offset:{base}")
        seq = a.ds(f"ds_read_b64_tr_b16 {vr(r+2,2)}, v{vVa+db} offset:{base+2048}")
        st[j] = (r, seq)
    PF = NF - 1
    def mk(j):
        def f():
            if j == 0:
                for x in range(PF): rd(x)
            db, kb, u = items[j]
            r, seq = st[j]
            a.wait_ds(seq)
            acc = vO + db * 16
            a.e(f"v_mfma_f32_32x32x16_bf16 {vr(acc,16)}, {vr(r,4)}, {vr(vP+(kb*2+u)*4,4)}, {vr(acc,16)}")
            if j + PF < len(items): rd(j + PF)
        return f
    return [mk(j) for j in range(len(items))]

sThr = 62; sFlag = 61
RARE = []
def softmax_head(S, uid):
    v = []
    v.append(f"v_max3_f32 v{vT0}, v{S+0}, v{S+1}, v{S+2}")
    v.append(f"v_max3_f32 v{vT1}, v{S+3}, v{S+4}, v{S+5}")
    v.append(f"v_max3_f32 v{vT2}, v{S+6}, v{S+7}, v{S+8}")
    v.append(f"v_max3_f32 v{vT3}, v{S+9}, v{S+10}, v{S+11}")
    k = 12; t = 0
    T = [vT0, vT1, vT2, vT3]
    while k < 32:
        v.append(f"v_max3_f32 v{T[t]}, v{T[t]}, v{S+k}, v{S+k+1}")
        k += 2; t = (t + 1) % 4
    v.append(f"v_max3_f32 v{vT0}, v{vT0}, v{vT1}, v{vT2}")
    v.append(f"v_max_f32 v{vT0}, v{vT0}, v{vT3}")
    v.append(f"v_mov_b32 v{vT1}, v{vT0}")
    v.append("s_nop 1")
    v.append(f"v_permlane32_swap_b32 v{vT0}, v{vT1}")
    v.append(f"v_max_f32 v{vT0}, v{vT0}, v{vT1}")
    v.append(f"v_sub_f32 v{vT1}, v{vT0}, v{vM}")
    v.append(f"v_cmp_lt_f32 vcc, s{sThr}, v{vT1}")
    v.append(f"s_cbranch_vccnz L_rs1_{uid}")
    v.append(f"L_bk1_{uid}:")
    r = [f"L_rs1_{uid}:",
         f"v_max_f32 v{vT0}, v{vT0}, v{vM}",
         f"v_sub_f32 v{vT1}, v{vM}, v{vT0}",
         f"v_mul_f32 v{vT1}, s{sC}, v{vT1}",
         f"v_exp_f32 v{vAl}, v{vT1}",
         f"v_mov_b32 v{vM}, v{vT0}",
         f"v_mul_f32 v{vMc}, s{sC}, v{vT0}",
         f"s_mov_b32 s{sFlag}, 1",
         f"v_mul_f32 v{vLs}, v{vLs}, v{vAl}",
         f"s_branch L_bk1_{uid}"]
    RARE.extend(r)
    return [(x, 4, None) for x in v]

def softmax_body(S):
    v = []
    for i in range(32 + 2):
        if i < 32: v.append((f"v_fma_f32 v{S+i}, v{S+i}, s{sC}, -v{vMc}", 4, None))
        if 0 <= i - 1 < 32: v.append((f"v_exp_f32 v{S+i-1}, v{S+i-1}", 8, i - 1))
        if 0 <= i - 2 < 32: v.append((f"v_add_f32 v{vLs}, v{vLs}, v{S+i-2}", 4, None))
    return v

def rescale_check(a, uid):
    a.e(f"s_cmp_lg_u32 s{sFlag}, 0")
    a.e(f"s_cbranch_scc1 L_rs2_{uid}")
    a.lab(f"L_bk2_{uid}")
    r = [f"L_rs2_{uid}:", "s_nop 7", "s_nop 7"]
    for i in range(64): r.append(f"v_mul_f32 v{vO+i}, v{vO+i}, v{vAl}")
    r += [f"s_mov_b32 s{sFlag}, 0", "s_nop 1", f"s_branch L_bk2_{uid}"]
    RARE.extend(r)

UID = [0]
NVS = 5
class Op:
    def __init__(s, rd, mf): s.rd = rd; s.mf = mf; s.st = None
def mk_qk(a, pool, tile, Sdst):
    slot = tile % 4
    ops = []
    for kb in range(2):
        for s_ in range(8):
            def rd(kb=kb, s_=s_):
                r = pool.get()
                seq = a.ds(f"ds_read_b128 {vr(r,4)}, v{vKa+s_} offset:{KRING+slot*16384+kb*8192}")
                return (r, seq)
            def mf(st, kb=kb, s_=s_):
                r, seq = st
                a.wait_ds(seq)
                acc = Sdst + kb * 16
                cin = "0" if s_ == 0 else vr(acc, 16)
                a.e(f"v_mfma_f32_32x32x16_bf16 {vr(acc,16)}, {vr(r,4)}, {vr(vQ+4*s_,4)}, {cin}")
            ops.append(Op(rd, mf))
    return ops
def mk_pv(a, pool, tile):
    slot = tile % NVS
    ops = []
    for db in range(4):
        for kb in range(2):
            for u in range(2):
                def rd(db=db, kb=kb, u=u):
                    r = pool.get()
                    base = (slot % 4) * 16384 + (32 * kb + 16 * u) * 256
                    va = (vVa if slot < 4 else vVb) + db
                    a.ds(f"ds_read_b64_tr_b16 {vr(r,2)}, v{va} offset:{base}")
                    seq = a.ds(f"ds_read_b64_tr_b16 {vr(r+2,2)}, v{va} offset:{base+2048}")
                    return (r, seq)
                def mf(st, db=db, kb=kb, u=u):
                    r, seq = st
                    a.wait_ds(seq)
                    acc = vO + db * 16
                    a.e(f"v_mfma_f32_32x32x16_bf16 {vr(acc,16)}, {vr(r,4)}, {vr(vP+(kb*2+u)*4,4)}, {vr(acc,16)}")
                ops.append(Op(rd, mf))
    return ops

def attn_main(a, pool, kseq, vseq):
    PF = NF - 1
    allops = []
    plan = []
    plan.append((-1, 0, 0, 16)); allops += mk_qk(a, pool, 0, vS[0])
    for t in range(16):
        st = len(allops)
        pv = mk_pv(a, pool, t - 1) if t >= 1 else []
        qk = mk_qk(a, pool, t + 1, vS[(t + 1) % 2]) if t <= 14 else []
        allops += pv + qk
        plan.append((t, st, len(pv), len(qk)))
    plan.append((16, len(allops), 16, 0)); allops += mk_pv(a, pool, 15)
    rp = [0]
    def prefetch(upto, limit):
        while rp[0] <= upto and rp[0] < limit:
            allops[rp[0]].st = allops[rp[0]].rd(); rp[0] += 1
    def kdma(tile, half):
        if tile > 15: return
        if half == 0: a.e(f"s_add_u32 m0, s{sM0K}, {(tile%4)*16384}"); a.e("s_nop 0")
        a.vm(f"buffer_load_dwordx4 v{vDK0 if half==0 else vDK1}, s[{SK}:{SK+3}], s{sTile} offen offset:{1024*half} nt lds")
        if half == 1:
            kseq[tile] = a.vm_seq; a.e(f"s_add_u32 s{sTile}, s{sTile}, 16384")
    def vdma(tile, half):
        if tile > 15: return
        if half == 0: a.e(f"s_add_u32 m0, s{sM0V}, {(tile%NVS)*16384}"); a.e("s_nop 0")
        a.vm(f"buffer_load_dwordx4 v{vDV}, s[{SV}:{SV+3}], s{sTileV} offen offset:{1024*half} nt lds")
        if half == 1:
            vseq[tile] = a.vm_seq; a.e(f"s_add_u32 s{sTileV}, s{sTileV}, 16384")
    for pi, (t, st, npv, nqk) in enumerate(plan):
        n = npv + nqk
        nxt = plan[pi + 1] if pi + 1 < len(plan) else None
        limit = st + n + (min(PF, nxt[2]) if nxt else 0)
        if t == -1:
            a.c("---- QK(0)")
            a.wait_vm(kseq[0]); a.e("s_barrier")
            vdma(1, 0); vdma(1, 1); vdma(2, 0); vdma(2, 1); kdma(3, 0); kdma(3, 1)
            for j in range(n):
                prefetch(st + j + PF - 1 if j else st + PF - 1, limit)
                allops[st + j].mf(allops[st + j].st)
                prefetch(st + j + PF, limit)
            stamp(a)
            continue
        if t == 16:
            a.c("---- final PV")
            for j in range(n):
                prefetch(st + j + PF - 1, limit)
                allops[st + j].mf(allops[st + j].st)
                prefetch(st + j + PF, limit)
            continue
        uid = UID[0]; UID[0] += 1
        a.c(f"---- iteration t={t}")
        need = [x for x in (kseq.get(t + 1) if t <= 14 else None, vseq.get(t)) if x is not None]
        a.wait_vm(max(need))
        a.e("s_barrier")
        S = vS[t % 2]
        main = softmax_head(S, uid) + softmax_body(S)
        tot = sum(w for _, w, _ in main) + 64
        stt = {"mi": 0, "cv": 0, "cum": 0, "since": {}, "cnt": 0}
        def emit_main():
            txt, w, tag = main[stt["mi"]]; stt["mi"] += 1
            a.e(txt); stt["cum"] += w; stt["cnt"] += 1
            if tag is not None: stt["since"][tag] = stt["cnt"]
        def cvt_ready():
            j = stt["cv"]
            if j >= 16: return False
            e = stt["since"].get(2 * j + 1)
            return e is not None and stt["cnt"] > e
        def emit_cvt():
            j = stt["cv"]; stt["cv"] += 1
            a.e(f"v_cvt_pk_bf16_f32 v{vP+j}, v{S+2*j}, v{S+2*j+1}"); stt["cum"] += 4; stt["cnt"] += 1
        def wopf():
            if t != int(os.environ.get("WOPF", "10")): return
            a.e(f"s_lshl_b32 s54, s{sW}, 11"); a.e(f"s_add_u32 m0, s54, {VRING+5*16384}")
            a.e(f"v_lshlrev_b32 v{vDW0}, 4, v{vLane}"); a.e(f"v_add_u32 v{vDW0}, s54, v{vDW0}")
            a.vm(f"buffer_load_dwordx4 v{vDW0}, s[4:7], 0 offen lds")
            a.vm(f"buffer_load_dwordx4 v{vDW0}, s[4:7], 0 offen offset:1024 lds")
        dm = {9: wopf, 1: lambda: kdma(t + 4, 0), 3: lambda: kdma(t + 4, 1), 5: lambda: vdma(t + 3, 0), 7: lambda: vdma(t + 3, 1)}
        for j in range(n):
            prefetch(st + j + PF - 1, limit)
            allops[st + j].mf(allops[st + j].st)
            prefetch(st + j + PF, limit)
            if j in dm: dm[j]()
            if npv and j == npv - 1: rescale_check(a, uid)
            target = tot * (j + 1) // n
            while stt["cum"] < target:
                if j >= npv - 1 and cvt_ready(): emit_cvt()
                elif stt["mi"] < len(main): emit_main()
                else: break
        while stt["mi"] < len(main): emit_main()
        a.e("s_nop 0")
        while stt["cv"] < 16: emit_cvt()
        if not npv: a.e(f"s_mov_b32 s{sFlag}, 0")
        if t in (0, 12): stamp(a)

STAMP = os.environ.get("STAMP")
stamp_n = [0]
def stamp(a):
    if not STAMP: return
    i = stamp_n[0]; stamp_n[0] += 1
    if i >= 18: return
    rt = os.environ.get("RT") and i in (0, 7)
    a.e(f"{'s_memrealtime' if rt else 's_memtime'} s[{64+2*i}:{65+2*i}]"); a.e("s_waitcnt lgkmcnt(0)")
def stamp_store(a):
    if not STAMP: return
    a.e("s_load_dwordx2 s[56:57], s[0:1], 48"); a.e("s_waitcnt lgkmcnt(0)")
    a.e("s_mov_b32 s58, 256"); a.e("s_mov_b32 s59, 0x00020000")
    a.e("s_cmp_lg_u32 s2, 0"); a.e("s_cbranch_scc1 L_nostamp")
    a.e(f"s_cmp_lg_u32 s{sW}, 0"); a.e("s_cbranch_scc1 L_nostamp")
    a.e("v_mov_b32 v2, 0")
    for i in range(min(18,stamp_n[0])):
        a.e(f"v_mov_b32 v3, s{64+2*i}")
        a.e(f"buffer_store_dword v3, v2, s[56:59], 0 offen offset:{4*i}")
    a.lab("L_nostamp")

def gen_attn(a):
    a.lab("attn_kernel")
    a.e("s_cmp_ge_u32 s2, 256")
    a.e("s_cbranch_scc1 L_attn_done")
    stamp(a)
    a.e("s_load_dwordx4 s[44:47], s[0:1], 0")
    a.e("s_load_dwordx4 s[48:51], s[0:1], 16")
    a.e("s_load_dwordx2 s[52:53], s[0:1], 56")
    if os.environ.get("MAPB"):
        a.e(f"s_and_b32 s{sB}, s2, 7")
        a.e(f"s_lshr_b32 s{sH}, s2, 3")
    else:
        a.e(f"s_lshr_b32 s{sB}, s2, 5")
        a.e(f"s_and_b32 s{sH}, s2, 31")
    a.e(f"s_lshl_b32 s60, s{sB}, 5"); a.e(f"s_add_u32 s60, s60, s{sH}")
    a.e(f"v_lshrrev_b32 v{vT0}, 6, v0")
    a.e(f"v_and_b32 v{vLane}, 63, v0")
    a.e("s_nop 0")
    a.e(f"v_readfirstlane_b32 s{sW}, v{vT0}")
    a.e("s_waitcnt lgkmcnt(0)")
    a.e(f"s_lshl_b32 s54, s{sB}, 18")
    a.e(f"s_add_u32 s{SX}, s44, s54"); a.e(f"s_addc_u32 s{SX+1}, s45, 0")
    a.e(f"s_mov_b32 s{SX+2}, 262144"); a.e(f"s_mov_b32 s{SX+3}, 0x00020000")
    a.e("s_lshl_b32 s54, s60, 18")
    a.e(f"s_add_u32 s{SK}, s46, s54"); a.e(f"s_addc_u32 s{SK+1}, s47, 0")
    a.e(f"s_mov_b32 s{SK+2}, 262144"); a.e(f"s_mov_b32 s{SK+3}, 0x00020000")
    a.e(f"s_add_u32 s{SV}, s48, s54"); a.e(f"s_addc_u32 s{SV+1}, s49, 0")
    a.e(f"s_mov_b32 s{SV+2}, 262144"); a.e(f"s_mov_b32 s{SV+3}, 0x00020000")
    a.e(f"s_lshl_b32 s54, s{sH}, 8")
    a.e(f"s_add_u32 s{SWQ}, s50, s54"); a.e(f"s_addc_u32 s{SWQ+1}, s51, 0")
    a.e(f"s_sub_u32 s{SWQ+2}, 4194304, s54"); a.e(f"s_mov_b32 s{SWQ+3}, 0x00020000")
    a.e(f"s_lshl_b32 s54, s{sB}, 21"); a.e(f"s_lshl_b32 s55, s{sH}, 13"); a.e("s_add_u32 s54, s54, s55")
    a.e(f"s_add_u32 s{SO}, s52, s54"); a.e(f"s_addc_u32 s{SO+1}, s53, 0")
    a.e(f"s_sub_u32 s{SO+2}, 16777216, s54"); a.e(f"s_mov_b32 s{SO+3}, 0x00020000")
    a.e(f"s_mov_b32 s{sC}, {f32hex(SCALE)}")
    a.e("s_load_dwordx2 s[56:57], s[0:1], 32"); a.e("s_waitcnt lgkmcnt(0)")
    a.e("s_lshl_b32 s54, s2, 14")
    a.e("s_add_u32 s4, s56, s54"); a.e("s_addc_u32 s5, s57, 0")
    a.e("s_mov_b32 s6, 16384"); a.e("s_mov_b32 s7, 0x00020000")
    q, hh, g, r, c4 = 40, 41, 42, 43, 44
    t5, t6, t7 = 45, 46, 47
    a.e(f"v_and_b32 v{q}, 31, v{vLane}")
    a.e(f"v_lshrrev_b32 v{hh}, 5, v{vLane}")
    a.e(f"v_lshrrev_b32 v{g}, 4, v{vLane}")
    a.e(f"v_bfe_u32 v{r}, v{vLane}, 2, 2")
    a.e(f"v_and_b32 v{c4}, 3, v{vLane}")
    a.e(f"v_and_b32 v{t5}, 15, v{q}")
    a.e(f"v_xor_b32 v{t5}, v{t5}, v{hh}")
    for s in range(8):
        a.e(f"v_xor_b32 v{t6}, {2*s}, v{t5}")
        a.e(f"v_lshlrev_b32 v{t6}, 4, v{t6}")
        a.e(f"v_lshl_add_u32 v{vKa+s}, v{q}, 8, v{t6}")
    a.e(f"v_lshrrev_b32 v{t5}, 1, v{g}")
    a.e(f"v_lshl_add_u32 v{t6}, v{t5}, 2, v{r}")
    a.e(f"v_lshlrev_b32 v{t6}, 8, v{t6}")
    a.e(f"v_and_b32 v{t7}, 1, v{g}")
    a.e(f"v_lshl_add_u32 v{t6}, v{t7}, 5, v{t6}")
    a.e(f"v_lshl_add_u32 v{t6}, v{c4}, 3, v{t6}")
    a.e(f"v_add_u32 v{t6}, {VRING}, v{t6}")
    for db in range(4):
        a.e(f"v_xor_b32 v{t7}, {db}, v{r}")
        a.e(f"v_lshl_add_u32 v{vVa+db}, v{t7}, 6, v{t6}")
        a.e(f"v_add_u32 v{vVb+db}, 0x10000, v{vVa+db}")
    a.e(f"v_lshl_add_u32 v{t6}, v{t5}, 3, v{r}")
    a.e(f"v_lshlrev_b32 v{t6}, 8, v{t6}")
    a.e(f"v_and_b32 v{t7}, 1, v{g}")
    a.e(f"v_lshl_add_u32 v{t6}, v{t7}, 5, v{t6}")
    a.e(f"v_and_b32 v{t7}, 1, v{c4}")
    a.e(f"v_lshl_add_u32 v{t6}, v{t7}, 4, v{t6}")
    a.e(f"v_lshrrev_b32 v{t7}, 1, v{c4}")
    a.e(f"v_lshl_add_u32 v{t6}, v{t7}, 3, v{t6}")
    a.e(f"v_add_u32 v{t6}, {WBASE}, v{t6}")
    for db in range(4):
        a.e(f"v_xor_b32 v{t7}, {db}, v{r}")
        a.e(f"v_lshl_add_u32 v{vWa+db}, v{t7}, 6, v{t6}")
    a.e(f"s_lshl_b32 s54, s{sW}, 3")
    a.e(f"v_add_u32 v{t5}, s54, v{g}")
    a.e(f"v_and_b32 v{t6}, 15, v{vLane}")
    a.e(f"v_and_b32 v{t7}, 15, v{t5}")
    a.e(f"v_xor_b32 v{t7}, v{t7}, v{t6}")
    a.e(f"v_lshlrev_b32 v{t7}, 4, v{t7}")
    a.e(f"v_lshl_add_u32 v{vDK0}, v{t5}, 8, v{t7}")
    a.e(f"v_add_u32 v{t7}, 4, v{t5}")
    a.e(f"v_and_b32 v{t7}, 15, v{t7}")
    a.e(f"v_xor_b32 v{t7}, v{t7}, v{t6}")
    a.e(f"v_lshlrev_b32 v{t7}, 4, v{t7}")
    a.e(f"v_lshl_add_u32 v{vDK1}, v{t5}, 8, v{t7}")
    a.e(f"v_and_b32 v{t7}, 3, v{t5}")
    a.e(f"v_lshlrev_b32 v{t7}, 2, v{t7}")
    a.e(f"v_xor_b32 v{t7}, v{t7}, v{t6}")
    a.e(f"v_lshlrev_b32 v{t7}, 4, v{t7}")
    a.e(f"v_lshl_add_u32 v{vDV}, v{t5}, 8, v{t7}")
    a.e(f"v_lshl_add_u32 v{vDW0}, v{t5}, 13, v{t7}")
    a.e(f"v_add_u32 v{vDW1}, 31744, v{vDW0}")
    a.e(f"s_lshl_b32 s54, s{sW}, 5")
    a.e(f"v_add_u32 v{t5}, s54, v{q}")
    a.e(f"v_lshlrev_b32 v{t5}, 10, v{t5}")
    a.e(f"v_lshl_add_u32 v{vX}, v{hh}, 4, v{t5}")
    a.e(f"s_lshl_b32 s54, s{sW}, 18")
    a.e(f"v_lshlrev_b32 v{t5}, 4, v{vLane}")
    a.e(f"v_add_u32 v{vOo}, s54, v{t5}")
    a.e(f"s_lshl_b32 s54, s{sW}, 11")
    a.e(f"s_add_u32 s{sM0K}, s54, {KRING}")
    a.e(f"s_add_u32 s{sM0V}, s54, {VRING}")
    a.e(f"s_add_u32 s{sM0W}, s54, {WBASE}")
    a.e(f"s_mov_b32 s{sTile}, 0"); a.e(f"s_mov_b32 s{sTileV}, 0"); a.e(f"s_mov_b32 s{sWqOff}, 0")
    WSLOT = [VRING + 3 * 16384, WBUF, WBUF + 16384]
    XBUF = [KRING + 2 * 16384, VRING + 1 * 16384]
    vXd = 48
    vXa = 52
    vXf = vO
    sXoff = 43
    a.e(f"v_and_b32 v{t6}, 15, v{vLane}")
    a.e(f"v_xor_b32 v{t6}, v{t6}, v{g}")
    a.e(f"s_lshl_b32 s54, s{sW}, 15")
    for i in range(4):
        a.e(f"v_xor_b32 v{t7}, {4*i}, v{t6}")
        a.e(f"v_lshrrev_b32 v{t5}, 3, v{t7}")
        a.e(f"v_lshl_add_u32 v{t5}, v{g}, 1, v{t5}")
        a.e(f"v_lshlrev_b32 v{t5}, 10, v{t5}")
        a.e(f"v_and_b32 v{t7}, 7, v{t7}")
        a.e(f"v_lshl_add_u32 v{t5}, v{t7}, 4, v{t5}")
        a.e(f"v_add_u32 v{t5}, {8192*i - 1024*i}, v{t5}")
        a.e(f"v_add_u32 v{vXd+i}, s54, v{t5}")
    a.e(f"v_lshrrev_b32 v{t5}, 1, v{q}")
    a.e(f"v_and_b32 v{t6}, 1, v{q}")
    a.e(f"v_lshl_add_u32 v{t6}, v{t6}, 3, v{hh}")
    a.e(f"v_xor_b32 v{t6}, v{t6}, v{t5}")
    a.e(f"s_lshl_b32 s54, s{sW}, 12")
    a.e(f"v_lshlrev_b32 v{t5}, 8, v{t5}")
    a.e(f"v_add_u32 v{t5}, s54, v{t5}")
    a.e(f"v_add_u32 v{t5}, 32768, v{t5}")
    for s_ in range(4):
        a.e(f"v_xor_b32 v{t7}, {2*s_}, v{t6}")
        a.e(f"v_lshl_add_u32 v{vXa+s_}, v{t7}, 4, v{t5}")
    ROT = os.environ.get("ROT")
    if ROT:
        a.e(f"s_and_b32 s55, s{sB if ROT=='b' else sH}, 7")
        a.e(f"s_lshl_b32 s{sXoff}, s55, 7")
        a.e(f"s_lshl_b32 s{sWqOff}, s55, 19")
    else:
        a.e(f"s_mov_b32 s{sXoff}, 0")
    a.e(f"s_mov_b32 s63, s54")
    def xload(c):
        a.e(f"s_add_u32 m0, s63, {XBUF[c%2]}")
        a.e("s_nop 0")
        for i in range(4):
            sq = a.vm(f"buffer_load_dwordx4 v{vXd+i}, s[{SX}:{SX+3}], s{sXoff} offen offset:{i*1024} lds")
        a.e(f"s_add_u32 s{sXoff}, s{sXoff}, 128")
        a.e(f"s_and_b32 s{sXoff}, s{sXoff}, 1023")
        return sq
    def wload(c):
        sq = dma_tile(a, SWQ, vDW0, vDW1, sWqOff, sM0W, WSLOT[c % 3] - WBASE, nt=False)
        a.e(f"s_add_u32 s{sWqOff}, s{sWqOff}, 524288")
        a.e(f"s_and_b32 s{sWqOff}, s{sWqOff}, 0x3fffff")
        return sq
    def kpart(slot):
        sq = dma_tile(a, SK, vDK0, vDK1, sTile, sM0K, slot * 16384); a.e(f"s_add_u32 s{sTile}, s{sTile}, 16384"); return sq
    def vpart(slot):
        sq = dma_tile(a, SV, vDV, vDV, sTileV, sM0V, slot * 16384); a.e(f"s_add_u32 s{sTileV}, s{sTileV}, 16384"); return sq
    kvparts = {1: lambda: kpart(0), 3: lambda: kpart(1), 5: lambda: vpart(0), 7: lambda: kpart(2)}
    xs = {}
    for c in range(2):
        wload(c); xs[c] = xload(c)
        if c == int(os.environ.get("QPF", "1")):
            a.e("s_lshl_b32 s54, s2, 14"); a.e(f"s_lshl_b32 s55, s{sW}, 11"); a.e("s_add_u32 s54, s54, s55")
            a.e("s_add_u32 s8, s50, s54"); a.e("s_addc_u32 s9, s51, 0"); a.e("s_mov_b32 s10, 2048"); a.e("s_mov_b32 s11, 0x00020000")
            a.e(f"v_lshlrev_b32 v{vP+12}, 4, v{vLane}")
            a.vm(f"buffer_load_dwordx4 {vr(vP,4)}, v{vP+12}, s[8:11], 0 offen")
            a.vm(f"buffer_load_dwordx4 {vr(vP+4,4)}, v{vP+12}, s[8:11], 0 offen offset:1024")
            a.e("s_lshl_b32 s54, s2, 13"); a.e(f"s_lshl_b32 s55, s{sW}, 10"); a.e("s_add_u32 s54, s54, s55")
            a.e("s_add_u32 s8, s44, s54"); a.e("s_addc_u32 s9, s45, 0"); a.e("s_mov_b32 s10, 1024")
            a.vm(f"buffer_load_dwordx4 {vr(vP+8,4)}, v{vP+12}, s[8:11], 0 offen")
    pool = FragPool()
    QA = vS[0]
    kvseq = {}
    for c in range(8):
        a.c(f"-- qproj chunk {c}")
        a.wait_vm(xs[c])
        if os.environ.get("QST"): stamp(a)
        a.e("s_barrier")
        if os.environ.get("QST") and c < 2: stamp(a)
        for s_ in range(4):
            xq = a.ds(f"ds_read_b128 {vr(vXf+4*s_,4)}, v{vXa+s_} offset:{XBUF[c%2]-KRING-32768}")
        items = [(s, db) for s in range(4) for db in range(4)]
        st = {}
        def rd(j):
            s, db = items[j]
            rr = pool.get()
            base = (WSLOT[c % 3] - WBASE) + s * 4096
            a.ds(f"ds_read_b64_tr_b16 {vr(rr,2)}, v{vWa+db} offset:{base}")
            seq = a.ds(f"ds_read_b64_tr_b16 {vr(rr+2,2)}, v{vWa+db} offset:{base+1024}")
            st[j] = (rr, seq)
        PF = NF - 1
        for x in range(PF): rd(x)
        a.wait_ds(xq)
        if c + 2 < 8: wload(c + 2); xs[c + 2] = xload(c + 2)
        if c in kvparts: kvseq[c] = kvparts[c]()
        for j, (s, db) in enumerate(items):
            rr, seq = st[j]
            a.wait_ds(seq)
            acc = QA + db * 16
            cin = "0" if (c == 0 and s == 0) else vr(acc, 16)
            a.e(f"v_mfma_f32_32x32x16_bf16 {vr(acc,16)}, {vr(rr,4)}, {vr(vXf+4*s,4)}, {cin}")
            if j + PF < len(items): rd(j + PF)
    stamp(a)
    a.e("s_nop 7"); a.e("s_nop 7")
    for db in range(4):
        for j in range(8):
            a.e(f"v_cvt_pk_bf16_f32 v{vQ+db*8+j}, v{QA+db*16+2*j}, v{QA+db*16+2*j+1}")
    for i in range(64): a.e(f"v_mov_b32 v{vO+i}, 0")
    a.e(f"v_mov_b32 v{vM}, 0xff800000")
    a.e(f"s_mov_b32 s{sThr}, {f32hex(8.0/SCALE)}"); a.e(f"s_mov_b32 s{sFlag}, 0")
    a.e(f"v_mov_b32 v{vLs}, 0")
    attn_main(a, pool, {0: kvseq[1], 1: kvseq[3], 2: kvseq[7]}, {0: kvseq[5]})
    stamp(a)
    a.e(f"v_mov_b32 v{vT1}, v{vLs}")
    a.e("s_nop 1")
    a.e(f"v_permlane32_swap_b32 v{vLs}, v{vT1}")
    a.e(f"v_add_f32 v{vLs}, v{vLs}, v{vT1}")
    a.e(f"v_rcp_f32 v{vAl}, v{vLs}")
    a.e("s_nop 7"); a.e("s_nop 7")
    a.e("s_mov_b32 s54, 4096")
    for db in range(4):
        for u in range(2):
            base = vO + db * 16 + 8 * u
            for j in range(8):
                a.e(f"v_mul_f32 v{base+j}, v{base+j}, v{vAl}")
            dst = vP + (db * 2 + u) % 4 * 4
            for j in range(4):
                a.e(f"v_cvt_pk_bf16_f32 v{dst+j}, v{base+2*j}, v{base+2*j+1}")
            idx = db * 2 + u
            so = "0" if idx < 4 else "s54"
            a.e(f"buffer_store_dwordx4 {vr(dst,4)}, v{vOo}, s[{SO}:{SO+3}], {so} offen offset:{(idx%4)*1024}{os.environ.get('OST','')}")
    a.e("s_waitcnt vmcnt(0)")
    stamp(a); stamp(a)
    stamp_store(a)
    a.lab("L_attn_done")
    a.e("s_endpgm")
    for x in RARE: a.e(x)

def gen_gemm(a):
    a.lab("oproj_kernel")
    vL = 1; vBo0 = 2; vBo1 = 3; vD = 4; vA0 = 5; vA1 = 6; vt0 = 7; vt1 = 8; vt2 = 9; vRed = 10; vOut = 11
    vB = 16
    vAcc = 112
    vFr = 176
    NFR = 8
    SOf = 12; SWo = 16; SOut = 20
    sWv = 34; sCh = 36; sWoOff = 37; sTmp = 38
    a.e("s_cmp_ge_u32 s2, 256")
    a.e("s_cbranch_scc1 L_gemm_done")
    a.e("s_load_dwordx4 s[44:47], s[0:1], 32")
    a.e("s_load_dwordx2 s[52:53], s[0:1], 56")
    a.e("s_lshr_b32 s3, s2, 6"); a.e("s_lshl_b32 s3, s3, 3"); a.e("s_and_b32 s33, s2, 7"); a.e("s_add_u32 s3, s3, s33")
    a.e("s_bfe_u32 s33, s2, 0x30003")
    a.e(f"v_lshrrev_b32 v{vt0}, 6, v0")
    a.e(f"v_and_b32 v{vL}, 63, v0")
    a.e("s_nop 0")
    a.e(f"v_readfirstlane_b32 s{sWv}, v{vt0}")
    a.e("s_waitcnt lgkmcnt(0)")
    a.e("s_lshl_b32 s54, s3, 19"); a.e(f"s_lshl_b32 s55, s{sWv}, 16"); a.e("s_add_u32 s54, s54, s55")
    a.e(f"s_add_u32 s{SOf}, s52, s54"); a.e(f"s_addc_u32 s{SOf+1}, s53, 0")
    a.e(f"s_sub_u32 s{SOf+2}, 16777216, s54"); a.e(f"s_mov_b32 s{SOf+3}, 0x00020000")
    a.e(f"s_lshl_b32 s54, s{sWv}, 20"); a.e("s_lshl_b32 s55, s33, 7"); a.e("s_add_u32 s54, s54, s55")
    a.e(f"s_add_u32 s{SWo}, s44, s54"); a.e(f"s_addc_u32 s{SWo+1}, s45, 0")
    a.e(f"s_sub_u32 s{SWo+2}, 4194304, s54"); a.e(f"s_mov_b32 s{SWo+3}, 0x00020000")
    a.e("s_lshl_b32 s54, s3, 16"); a.e("s_add_u32 s54, s54, s55")
    a.e(f"s_add_u32 s{SOut}, s46, s54"); a.e(f"s_addc_u32 s{SOut+1}, s47, 0")
    a.e(f"s_sub_u32 s{SOut+2}, 2097152, s54"); a.e(f"s_mov_b32 s{SOut+3}, 0x00020000")
    a.e(f"v_lshlrev_b32 v{vBo0}, 4, v{vL}")
    a.e(f"v_add_u32 v{vBo1}, 262144, v{vBo0}")
    a.e(f"v_lshrrev_b32 v{vt0}, 3, v{vL}")
    a.e(f"v_and_b32 v{vt1}, 7, v{vL}")
    a.e(f"v_bfe_u32 v{vt2}, v{vL}, 4, 1")
    a.e(f"v_lshlrev_b32 v{vt2}, 2, v{vt2}")
    a.e(f"v_xor_b32 v{vt1}, v{vt1}, v{vt2}")
    a.e(f"v_lshlrev_b32 v{vt1}, 4, v{vt1}")
    a.e(f"v_lshl_add_u32 v{vD}, v{vt0}, 10, v{vt1}")
    a.e(f"v_lshrrev_b32 v{vt0}, 5, v{vL}")
    a.e(f"v_bfe_u32 v{vt1}, v{vL}, 2, 2")
    a.e(f"v_lshl_add_u32 v{vt0}, v{vt0}, 2, v{vt1}")
    a.e(f"v_lshlrev_b32 v{vt0}, 7, v{vt0}")
    a.e(f"v_bfe_u32 v{vt2}, v{vL}, 4, 1")
    a.e(f"v_lshl_add_u32 v{vt0}, v{vt2}, 5, v{vt0}")
    a.e(f"v_and_b32 v{vt2}, 3, v{vL}")
    a.e(f"v_lshl_add_u32 v{vt0}, v{vt2}, 3, v{vt0}")
    a.e(f"s_mul_i32 s54, s{sWv}, 24576")
    a.e(f"v_add_u32 v{vt0}, s54, v{vt0}")
    a.e(f"v_lshrrev_b32 v{vt1}, 1, v{vt1}")
    a.e(f"v_lshl_add_u32 v{vA0}, v{vt1}, 6, v{vt0}")
    a.e(f"v_xor_b32 v{vt1}, 1, v{vt1}")
    a.e(f"v_lshl_add_u32 v{vA1}, v{vt1}, 6, v{vt0}")
    a.e(f"s_mov_b32 s{sCh}, 0"); a.e(f"s_mov_b32 s{sWoOff}, 0")
    a.e(f"s_mov_b32 s39, s54")
    def load_chunk(buf):
        for mb in range(2):
            for s in range(4):
                if os.environ.get("NOB"): continue
                a.e(f"buffer_load_dwordx4 {vr(vB+buf*32+mb*16+s*4,4)}, v{vBo0 if mb==0 else vBo1}, s[{SOf}:{SOf+3}], s{sCh} offen offset:{s*1024}{os.environ.get('OLD','')}")
        a.e(f"s_add_u32 s{sCh}, s{sCh}, 4096")
        for i in range(8):
            a.e(f"s_add_u32 m0, s39, {buf*8192+i*1024}")
            a.e(f"s_add_u32 s{sTmp}, s{sWoOff}, {i*8192}")
            if not os.environ.get("NOA"): a.e(f"buffer_load_dwordx4 v{vD}, s[{SWo}:{SWo+3}], s{sTmp} offen{os.environ.get('WLD','')} lds")
        a.e(f"s_add_u32 s{sWoOff}, s{sWoOff}, 65536")
    load_chunk(0); load_chunk(1)
    pi = [0]
    def getf():
        r = vFr + 4 * (pi[0] % NFR); pi[0] += 1; return r
    for ch in range(16):
        buf = ch % 3
        a.c(f"-- chunk {ch}")
        if ch + 2 < 16:
            load_chunk((ch + 2) % 3)
            a.e("s_waitcnt vmcnt(32)")
        elif ch + 1 < 16:
            a.e("s_waitcnt vmcnt(16)")
        else:
            a.e("s_waitcnt vmcnt(0)")
        items = [(s, nb) for s in range(4) for nb in range(2)]
        st = {}
        def rd(j):
            s, nb = items[j]
            rr = getf()
            base = buf * 8192 + 16 * s * 128
            a.ds(f"ds_read_b64_tr_b16 {vr(rr,2)}, v{vA0 if nb==0 else vA1} offset:{base}")
            seq = a.ds(f"ds_read_b64_tr_b16 {vr(rr+2,2)}, v{vA0 if nb==0 else vA1} offset:{base+1024}")
            st[j] = (rr, seq)
        PF = 4
        for x in range(PF): rd(x)
        for j, (s, nb) in enumerate(items):
            rr, seq = st[j]
            a.wait_ds(seq)
            for mb in range(2):
                acc = vAcc + (nb * 2 + mb) * 16
                cin = "0" if (ch == 0 and s == 0) else vr(acc, 16)
                a.e(f"v_mfma_f32_32x32x16_bf16 {vr(acc,16)}, {vr(rr,4)}, {vr(vB+buf*32+mb*16+s*4,4)}, {cin}")
            if j + PF < len(items): rd(j + PF)
    a.e("s_nop 7"); a.e("s_nop 7")
    a.e("s_barrier")
    a.e(f"s_lshl_b32 s54, s{sWv}, 14")
    a.e(f"v_lshlrev_b32 v{vt0}, 4, v{vL}")
    a.e(f"v_add_u32 v{vRed}, s54, v{vt0}")
    for qd in range(16):
        a.e(f"ds_write_b128 v{vRed}, {vr(vAcc+qd*4,4)} offset:{qd*1024}")
    a.e("s_waitcnt lgkmcnt(0)")
    a.e("s_barrier")
    a.e(f"s_lshl_b32 s54, s{sWv}, 12")
    a.e(f"v_add_u32 v{vRed}, s54, v{vt0}")
    for src in range(4):
        for qd in range(4):
            a.e(f"ds_read_b128 {vr(vB+src*16+qd*4,4)}, v{vRed} offset:{src*16384+qd*1024}")
    a.e("s_waitcnt lgkmcnt(0)")
    for i in range(16):
        a.e(f"v_add_f32 v{vB+i}, v{vB+i}, v{vB+16+i}")
        a.e(f"v_add_f32 v{vB+32+i}, v{vB+32+i}, v{vB+48+i}")
    for i in range(16):
        a.e(f"v_add_f32 v{vB+i}, v{vB+i}, v{vB+32+i}")
    a.e(f"s_and_b32 s54, s{sWv}, 1"); a.e("s_lshl_b32 s54, s54, 15")
    a.e(f"s_lshr_b32 s55, s{sWv}, 1"); a.e("s_lshl_b32 s55, s55, 6"); a.e("s_add_u32 s54, s54, s55")
    a.e(f"v_and_b32 v{vt1}, 31, v{vL}")
    a.e(f"v_lshlrev_b32 v{vt1}, 10, v{vt1}")
    a.e(f"v_lshrrev_b32 v{vt2}, 5, v{vL}")
    a.e(f"v_lshl_add_u32 v{vt1}, v{vt2}, 3, v{vt1}")
    a.e(f"v_add_u32 v{vOut}, s54, v{vt1}")
    for q4 in range(4):
        a.e(f"v_cvt_pk_bf16_f32 v{vB+64+2*q4}, v{vB+4*q4}, v{vB+4*q4+1}")
        a.e(f"v_cvt_pk_bf16_f32 v{vB+64+2*q4+1}, v{vB+4*q4+2}, v{vB+4*q4+3}")
        a.e(f"buffer_store_dwordx2 {vr(vB+64+2*q4,2)}, v{vOut}, s[{SOut}:{SOut+3}], 0 offen offset:{q4*16}")
    a.lab("L_gemm_done")
    a.e("s_endpgm")

HDR = """; Kernarg layout for this problem (64 bytes, ptrs only, base s[0:1]):
;   offset   8: d_in[1] k_cache  shape=(8, 32, 1024, 128) dtype=bfloat16
;   offset  16: d_in[2] v_cache  shape=(8, 32, 1024, 128) dtype=bfloat16
; @launch kernel=attn_kernel grid=(256,1,1) block=(512,1,1) lds=163840
; @launch kernel=oproj_kernel grid=(256,1,1) block=(256,1,1) lds=98304
.amdgcn_target "amdgcn-amd-amdhsa--gfx950"
.text
"""
def kd(name, nv, ns=100):
    return f""".amdhsa_kernel {name}
  .amdhsa_next_free_vgpr {nv}
  .amdhsa_next_free_sgpr {ns}
  .amdhsa_accum_offset {nv}
  .amdhsa_group_segment_fixed_size 0
  .amdhsa_kernarg_size 64
  .amdhsa_user_sgpr_count 2
  .amdhsa_user_sgpr_kernarg_segment_ptr 1
  .amdhsa_system_sgpr_workgroup_id_x 1
  .amdhsa_float_denorm_mode_32 3
.end_amdhsa_kernel
"""
def main():
    out = HDR
    a = A(); gen_attn(a)
    out += ".globl attn_kernel\n.p2align 8\n.type attn_kernel,@function\n" + "\n".join(a.L) + "\n"
    b = A(); gen_gemm(b)
    out += ".globl oproj_kernel\n.p2align 8\n.type oproj_kernel,@function\n" + "\n".join(b.L) + "\n"
    out += '.section .rodata,"a"\n.p2align 6\n' + kd("attn_kernel", NVG1) + ".p2align 6\n" + kd("oproj_kernel", 208)
    open(sys.argv[1] if len(sys.argv) > 1 else "standalone__gqa_block_cached__near_ridge.s", "w").write(out)
main()
```

```python
import sys, math, os

class A:
    def __init__(s):
        s.L = []
        s.ds_seq = 0
        s.ds_done = 0
    def e(s, t): s.L.append("    " + t)
    def lab(s, t): s.L.append(t + ":")
    def c(s, t): s.L.append("    ; " + t)
    def ds(s, t):
        s.e(t); s.ds_seq += 1; return s.ds_seq
    def wait_ds(s, seq):
        if seq <= s.ds_done: return
        n = s.ds_seq - seq
        n = min(n, 15)
        s.e(f"s_waitcnt lgkmcnt({n})")
        s.ds_done = s.ds_seq - n
    def ds_reset(s):
        s.ds_seq = 0; s.ds_done = 0
    def vm(s, t):
        s.e(t); s.vm_seq = getattr(s, 'vm_seq', 0) + 1; return s.vm_seq
    def wait_vm(s, seq):
        n = s.vm_seq - seq
        assert n <= 63
        s.e(f"s_waitcnt vmcnt({n})")

def vr(a, n): return f"v[{a}:{a+n-1}]"

vLane = 1; vT0 = 2; vT1 = 3; vT2 = 4; vT3 = 5
vKa = 8
vVa = 16
vWa = 20
vDK0 = 24; vDK1 = 25; vDV = 26; vDW0 = 27; vDW1 = 28; vX = 29
vM = 30; vLs = 31
vQ = 32
vO = 64
vS = [128, 160]
vP = 192
vF = 208
NF = 6
vAl = 232; vMc = 233; vOo = 234; vVb = 235
NVG1 = 240
sB = 3; sH = 33; sW = 34
SX = 12; SK = 16; SV = 20; SWQ = 24; SO = 28
sC = 35
sTile = 36
sTileV = 37
sM0K = 38; sM0V = 39; sM0W = 40
sWqOff = 41
sLoop = 42
KRING = 0; VRING = 65536; WBUF = 131072; WBASE = VRING + 32768
SCALE = (128 ** -0.5) * math.log2(math.e)
import struct
def f32hex(x): return "0x%08x" % struct.unpack("<I", struct.pack("<f", x))[0]

def interleave(a, mfmas, valu, per=None):
    n = len(mfmas); tot = len(valu); done = 0
    for i, m in enumerate(mfmas):
        m()
        upto = (tot * (i + 1)) // n
        while done < upto:
            a.e(valu[done]); done += 1

class FragPool:
    def __init__(s): s.i = 0
    def get(s):
        r = vF + 4 * (s.i % NF); s.i += 1; return r

def dma_tile(a, srd, voff0, voff1, soff, m0sreg, slot_imm, nt=True):
    a.e(f"s_add_u32 m0, s{m0sreg}, {slot_imm}")
    a.e("s_nop 0")
    n = " nt" if nt else ""
    a.vm(f"buffer_load_dwordx4 v{voff0}, s[{srd}:{srd+3}], s{soff} offen{n} lds")
    return a.vm(f"buffer_load_dwordx4 v{voff1}, s[{srd}:{srd+3}], s{soff} offen offset:1024{n} lds")

def qk_ops(a, pool, slot, Sdst):
    items = [(kb, s) for kb in range(2) for s in range(8)]
    st = {}
    def rd(j):
        kb, s = items[j]
        r = pool.get()
        seq = a.ds(f"ds_read_b128 {vr(r,4)}, v{vKa+s} offset:{KRING+slot*16384+kb*8192}")
        st[j] = (r, seq)
    PF = NF - 1
    ops = []
    def mk(j):
        def f():
            if j == 0:
                for x in range(PF): rd(x)
            if j + PF < len(items) and j > 0: rd(j + PF - 1 + 0) if False else None
            kb, s = items[j]
            r, seq = st[j]
            a.wait_ds(seq)
            acc = Sdst + kb * 16
            cin = "0" if s == 0 else vr(acc, 16)
            a.e(f"v_mfma_f32_32x32x16_bf16 {vr(acc,16)}, {vr(r,4)}, {vr(vQ+4*s,4)}, {cin}")
            if j + PF < len(items): rd(j + PF)
        return f
    return [mk(j) for j in range(len(items))]

def pv_ops(a, pool, slot):
    items = [(db, kb, u) for db in range(4) for kb in range(2) for u in range(2)]
    st = {}
    def rd(j):
        db, kb, u = items[j]
        r = pool.get()
        base = slot * 16384 + (32 * kb + 16 * u) * 256
        a.ds(f"ds_read_b64_tr_b16 {vr(r,2)}, v{vVa+db} offset:{base}")
        seq = a.ds(f"ds_read_b64_tr_b16 {vr(r+2,2)}, v{vVa+db} offset:{base+2048}")
        st[j] = (r, seq)
    PF = NF - 1
    def mk(j):
        def f():
            if j == 0:
                for x in range(PF): rd(x)
            db, kb, u = items[j]
            r, seq = st[j]
            a.wait_ds(seq)
            acc = vO + db * 16
            a.e(f"v_mfma_f32_32x32x16_bf16 {vr(acc,16)}, {vr(r,4)}, {vr(vP+(kb*2+u)*4,4)}, {vr(acc,16)}")
            if j + PF < len(items): rd(j + PF)
        return f
    return [mk(j) for j in range(len(items))]

sThr = 62; sFlag = 61
RARE = []
def softmax_head(S, uid):
    v = []
    v.append(f"v_max3_f32 v{vT0}, v{S+0}, v{S+1}, v{S+2}")
    v.append(f"v_max3_f32 v{vT1}, v{S+3}, v{S+4}, v{S+5}")
    v.append(f"v_max3_f32 v{vT2}, v{S+6}, v{S+7}, v{S+8}")
    v.append(f"v_max3_f32 v{vT3}, v{S+9}, v{S+10}, v{S+11}")
    k = 12; t = 0
    T = [vT0, vT1, vT2, vT3]
    while k < 32:
        v.append(f"v_max3_f32 v{T[t]}, v{T[t]}, v{S+k}, v{S+k+1}")
        k += 2; t = (t + 1) % 4
    v.append(f"v_max3_f32 v{vT0}, v{vT0}, v{vT1}, v{vT2}")
    v.append(f"v_max_f32 v{vT0}, v{vT0}, v{vT3}")
    v.append(f"v_mov_b32 v{vT1}, v{vT0}")
    v.append("s_nop 1")
    v.append(f"v_permlane32_swap_b32 v{vT0}, v{vT1}")
    v.append(f"v_max_f32 v{vT0}, v{vT0}, v{vT1}")
    v.append(f"v_sub_f32 v{vT1}, v{vT0}, v{vM}")
    v.append(f"v_cmp_lt_f32 vcc, s{sThr}, v{vT1}")
    v.append(f"s_cbranch_vccnz L_rs1_{uid}")
    v.append(f"L_bk1_{uid}:")
    r = [f"L_rs1_{uid}:",
         f"v_max_f32 v{vT0}, v{vT0}, v{vM}",
         f"v_sub_f32 v{vT1}, v{vM}, v{vT0}",
         f"v_mul_f32 v{vT1}, s{sC}, v{vT1}",
         f"v_exp_f32 v{vAl}, v{vT1}",
         f"v_mov_b32 v{vM}, v{vT0}",
         f"v_mul_f32 v{vMc}, s{sC}, v{vT0}",
         f"s_mov_b32 s{sFlag}, 1",
         f"v_mul_f32 v{vLs}, v{vLs}, v{vAl}",
         f"s_branch L_bk1_{uid}"]
    RARE.extend(r)
    return [(x, 4, None) for x in v]

def softmax_body(S):
    v = []
    for i in range(32 + 2):
        if i < 32: v.append((f"v_fma_f32 v{S+i}, v{S+i}, s{sC}, -v{vMc}", 4, None))
        if 0 <= i - 1 < 32: v.append((f"v_exp_f32 v{S+i-1}, v{S+i-1}", 8, i - 1))
        if 0 <= i - 2 < 32: v.append((f"v_add_f32 v{vLs}, v{vLs}, v{S+i-2}", 4, None))
    return v

def rescale_check(a, uid):
    a.e(f"s_cmp_lg_u32 s{sFlag}, 0")
    a.e(f"s_cbranch_scc1 L_rs2_{uid}")
    a.lab(f"L_bk2_{uid}")
    r = [f"L_rs2_{uid}:", "s_nop 7", "s_nop 7"]
    for i in range(64): r.append(f"v_mul_f32 v{vO+i}, v{vO+i}, v{vAl}")
    r += [f"s_mov_b32 s{sFlag}, 0", "s_nop 1", f"s_branch L_bk2_{uid}"]
    RARE.extend(r)

UID = [0]
NVS = 5
class Op:
    def __init__(s, rd, mf): s.rd = rd; s.mf = mf; s.st = None
def mk_qk(a, pool, tile, Sdst):
    slot = tile % 4
    ops = []
    for kb in range(2):
        for s_ in range(8):
            def rd(kb=kb, s_=s_):
                r = pool.get()
                seq = a.ds(f"ds_read_b128 {vr(r,4)}, v{vKa+s_} offset:{KRING+slot*16384+kb*8192}")
                return (r, seq)
            def mf(st, kb=kb, s_=s_):
                r, seq = st
                a.wait_ds(seq)
                acc = Sdst + kb * 16
                cin = "0" if s_ == 0 else vr(acc, 16)
                a.e(f"v_mfma_f32_32x32x16_bf16 {vr(acc,16)}, {vr(r,4)}, {vr(vQ+4*s_,4)}, {cin}")
            ops.append(Op(rd, mf))
    return ops
def mk_pv(a, pool, tile):
    slot = tile % NVS
    ops = []
    for db in range(4):
        for kb in range(2):
            for u in range(2):
                def rd(db=db, kb=kb, u=u):
                    r = pool.get()
                    base = (slot % 4) * 16384 + (32 * kb + 16 * u) * 256
                    va = (vVa if slot < 4 else vVb) + db
                    a.ds(f"ds_read_b64_tr_b16 {vr(r,2)}, v{va} offset:{base}")
                    seq = a.ds(f"ds_read_b64_tr_b16 {vr(r+2,2)}, v{va} offset:{base+2048}")
                    return (r, seq)
                def mf(st, db=db, kb=kb, u=u):
                    r, seq = st
                    a.wait_ds(seq)
                    acc = vO + db * 16
                    a.e(f"v_mfma_f32_32x32x16_bf16 {vr(acc,16)}, {vr(r,4)}, {vr(vP+(kb*2+u)*4,4)}, {vr(acc,16)}")
                ops.append(Op(rd, mf))
    return ops

def attn_main(a, pool, kseq, vseq):
    PF = NF - 1
    allops = []
    plan = []
    plan.append((-1, 0, 0, 16)); allops += mk_qk(a, pool, 0, vS[0])
    for t in range(16):
        st = len(allops)
        pv = mk_pv(a, pool, t - 1) if t >= 1 else []
        qk = mk_qk(a, pool, t + 1, vS[(t + 1) % 2]) if t <= 14 else []
        allops += pv + qk
        plan.append((t, st, len(pv), len(qk)))
    plan.append((16, len(allops), 16, 0)); allops += mk_pv(a, pool, 15)
    rp = [0]
    def prefetch(upto, limit):
        while rp[0] <= upto and rp[0] < limit:
            allops[rp[0]].st = allops[rp[0]].rd(); rp[0] += 1
    def kdma(tile, half):
        if tile > 15: return
        if half == 0: a.e(f"s_add_u32 m0, s{sM0K}, {(tile%4)*16384}"); a.e("s_nop 0")
        a.vm(f"buffer_load_dwordx4 v{vDK0 if half==0 else vDK1}, s[{SK}:{SK+3}], s{sTile} offen offset:{1024*half} nt lds")
        if half == 1:
            kseq[tile] = a.vm_seq; a.e(f"s_add_u32 s{sTile}, s{sTile}, 16384")
    def vdma(tile, half):
        if tile > 15: return
        if half == 0: a.e(f"s_add_u32 m0, s{sM0V}, {(tile%NVS)*16384}"); a.e("s_nop 0")
        a.vm(f"buffer_load_dwordx4 v{vDV}, s[{SV}:{SV+3}], s{sTileV} offen offset:{1024*half} nt lds")
        if half == 1:
            vseq[tile] = a.vm_seq; a.e(f"s_add_u32 s{sTileV}, s{sTileV}, 16384")
    for pi, (t, st, npv, nqk) in enumerate(plan):
        n = npv + nqk
        nxt = plan[pi + 1] if pi + 1 < len(plan) else None
        limit = st + n + (min(PF, nxt[2]) if nxt else 0)
        if t == -1:
            a.c("---- QK(0)")
            a.wait_vm(kseq[0]); a.e("s_barrier")
            vdma(1, 0); vdma(1, 1); vdma(2, 0); vdma(2, 1); kdma(3, 0); kdma(3, 1)
            for j in range(n):
                prefetch(st + j + PF - 1 if j else st + PF - 1, limit)
                allops[st + j].mf(allops[st + j].st)
                prefetch(st + j + PF, limit)
            stamp(a)
            continue
        if t == 16:
            a.c("---- final PV")
            for j in range(n):
                prefetch(st + j + PF - 1, limit)
                allops[st + j].mf(allops[st + j].st)
                prefetch(st + j + PF, limit)
            continue
        uid = UID[0]; UID[0] += 1
        a.c(f"---- iteration t={t}")
        need = [x for x in (kseq.get(t + 1) if t <= 14 else None, vseq.get(t)) if x is not None]
        a.wait_vm(max(need))
        a.e("s_barrier")
        S = vS[t % 2]
        main = softmax_head(S, uid) + softmax_body(S)
        tot = sum(w for _, w, _ in main) + 64
        stt = {"mi": 0, "cv": 0, "cum": 0, "since": {}, "cnt": 0}
        def emit_main():
            txt, w, tag = main[stt["mi"]]; stt["mi"] += 1
            a.e(txt); stt["cum"] += w; stt["cnt"] += 1
            if tag is not None: stt["since"][tag] = stt["cnt"]
        def cvt_ready():
            j = stt["cv"]
            if j >= 16: return False
            e = stt["since"].get(2 * j + 1)
            return e is not None and stt["cnt"] > e
        def emit_cvt():
            j = stt["cv"]; stt["cv"] += 1
            a.e(f"v_cvt_pk_bf16_f32 v{vP+j}, v{S+2*j}, v{S+2*j+1}"); stt["cum"] += 4; stt["cnt"] += 1
        def wopf():
            if t != int(os.environ.get("WOPF", "10")): return
            a.e(f"s_lshl_b32 s54, s{sW}, 11"); a.e(f"s_add_u32 m0, s54, {VRING+5*16384}")
            a.e(f"v_lshlrev_b32 v{vDW0}, 4, v{vLane}"); a.e(f"v_add_u32 v{vDW0}, s54, v{vDW0}")
            a.vm(f"buffer_load_dwordx4 v{vDW0}, s[4:7], 0 offen lds")
            a.vm(f"buffer_load_dwordx4 v{vDW0}, s[4:7], 0 offen offset:1024 lds")
        dm = {9: wopf, 1: lambda: kdma(t + 4, 0), 3: lambda: kdma(t + 4, 1), 5: lambda: vdma(t + 3, 0), 7: lambda: vdma(t + 3, 1)}
        for j in range(n):
            prefetch(st + j + PF - 1, limit)
            allops[st + j].mf(allops[st + j].st)
            prefetch(st + j + PF, limit)
            if j in dm: dm[j]()
            if npv and j == npv - 1: rescale_check(a, uid)
            target = tot * (j + 1) // n
            while stt["cum"] < target:
                if j >= npv - 1 and cvt_ready(): emit_cvt()
                elif stt["mi"] < len(main): emit_main()
                else: break
        while stt["mi"] < len(main): emit_main()
        a.e("s_nop 0")
        while stt["cv"] < 16: emit_cvt()
        if not npv: a.e(f"s_mov_b32 s{sFlag}, 0")
        if t in (0, 12): stamp(a)

STAMP = os.environ.get("STAMP")
stamp_n = [0]
def stamp(a):
    if not STAMP: return
    i = stamp_n[0]; stamp_n[0] += 1
    if i >= 18: return
    rt = os.environ.get("RT") and i in (0, 7)
    a.e(f"{'s_memrealtime' if rt else 's_memtime'} s[{64+2*i}:{65+2*i}]"); a.e("s_waitcnt lgkmcnt(0)")
def stamp_store(a):
    if not STAMP: return
    a.e("s_load_dwordx2 s[56:57], s[0:1], 48"); a.e("s_waitcnt lgkmcnt(0)")
    a.e("s_mov_b32 s58, 256"); a.e("s_mov_b32 s59, 0x00020000")
    a.e("s_cmp_lg_u32 s2, 0"); a.e("s_cbranch_scc1 L_nostamp")
    a.e(f"s_cmp_lg_u32 s{sW}, 0"); a.e("s_cbranch_scc1 L_nostamp")
    a.e("v_mov_b32 v2, 0")
    for i in range(min(18,stamp_n[0])):
        a.e(f"v_mov_b32 v3, s{64+2*i}")
        a.e(f"buffer_store_dword v3, v2, s[56:59], 0 offen offset:{4*i}")
    a.lab("L_nostamp")

def gen_attn(a):
    a.lab("attn_kernel")
    a.e("s_cmp_ge_u32 s2, 256")
    a.e("s_cbranch_scc1 L_attn_done")
    stamp(a)
    a.e("s_load_dwordx4 s[44:47], s[0:1], 0")
    a.e("s_load_dwordx4 s[48:51], s[0:1], 16")
    a.e("s_load_dwordx2 s[52:53], s[0:1], 56")
    if os.environ.get("MAPB"):
        a.e(f"s_and_b32 s{sB}, s2, 7")
        a.e(f"s_lshr_b32 s{sH}, s2, 3")
    else:
        a.e(f"s_lshr_b32 s{sB}, s2, 5")
        a.e(f"s_and_b32 s{sH}, s2, 31")
    a.e(f"s_lshl_b32 s60, s{sB}, 5"); a.e(f"s_add_u32 s60, s60, s{sH}")
    a.e(f"v_lshrrev_b32 v{vT0}, 6, v0")
    a.e(f"v_and_b32 v{vLane}, 63, v0")
    a.e("s_nop 0")
    a.e(f"v_readfirstlane_b32 s{sW}, v{vT0}")
    a.e("s_load_dwordx2 s[56:57], s[0:1], 32")
    earlyL = a.L; lateL = []; srdL = []
    a.L = srdL
    a.e("s_waitcnt lgkmcnt(0)")
    a.e(f"s_lshl_b32 s54, s{sB}, 18")
    a.e(f"s_add_u32 s{SX}, s44, s54"); a.e(f"s_addc_u32 s{SX+1}, s45, 0")
    a.e(f"s_mov_b32 s{SX+2}, 262144"); a.e(f"s_mov_b32 s{SX+3}, 0x00020000")
    a.L = lateL
    a.e("s_lshl_b32 s54, s60, 18")
    a.e(f"s_add_u32 s{SK}, s46, s54"); a.e(f"s_addc_u32 s{SK+1}, s47, 0")
    a.e(f"s_mov_b32 s{SK+2}, 262144"); a.e(f"s_mov_b32 s{SK+3}, 0x00020000")
    a.e(f"s_add_u32 s{SV}, s48, s54"); a.e(f"s_addc_u32 s{SV+1}, s49, 0")
    a.e(f"s_mov_b32 s{SV+2}, 262144"); a.e(f"s_mov_b32 s{SV+3}, 0x00020000")
    a.L = srdL
    a.e(f"s_lshl_b32 s54, s{sH}, 8")
    a.e(f"s_add_u32 s{SWQ}, s50, s54"); a.e(f"s_addc_u32 s{SWQ+1}, s51, 0")
    a.e(f"s_sub_u32 s{SWQ+2}, 4194304, s54"); a.e(f"s_mov_b32 s{SWQ+3}, 0x00020000")
    a.L = lateL
    a.e(f"s_lshl_b32 s54, s{sB}, 21"); a.e(f"s_lshl_b32 s55, s{sH}, 13"); a.e("s_add_u32 s54, s54, s55")
    a.e(f"s_add_u32 s{SO}, s52, s54"); a.e(f"s_addc_u32 s{SO+1}, s53, 0")
    a.e(f"s_sub_u32 s{SO+2}, 16777216, s54"); a.e(f"s_mov_b32 s{SO+3}, 0x00020000")
    a.e(f"s_mov_b32 s{sC}, {f32hex(SCALE)}")
    a.e("s_lshl_b32 s54, s2, 14")
    a.e("s_add_u32 s4, s56, s54"); a.e("s_addc_u32 s5, s57, 0")
    a.e("s_mov_b32 s6, 16384"); a.e("s_mov_b32 s7, 0x00020000")
    a.L = earlyL
    q, hh, g, r, c4 = 40, 41, 42, 43, 44
    t5, t6, t7 = 45, 46, 47
    a.e(f"v_and_b32 v{q}, 31, v{vLane}")
    a.e(f"v_lshrrev_b32 v{hh}, 5, v{vLane}")
    a.e(f"v_lshrrev_b32 v{g}, 4, v{vLane}")
    a.e(f"v_bfe_u32 v{r}, v{vLane}, 2, 2")
    a.e(f"v_and_b32 v{c4}, 3, v{vLane}")
    a.L = lateL
    a.e(f"v_and_b32 v{t5}, 15, v{q}")
    a.e(f"v_xor_b32 v{t5}, v{t5}, v{hh}")
    for s in range(8):
        a.e(f"v_xor_b32 v{t6}, {2*s}, v{t5}")
        a.e(f"v_lshlrev_b32 v{t6}, 4, v{t6}")
        a.e(f"v_lshl_add_u32 v{vKa+s}, v{q}, 8, v{t6}")
    a.e(f"v_lshrrev_b32 v{t5}, 1, v{g}")
    a.e(f"v_lshl_add_u32 v{t6}, v{t5}, 2, v{r}")
    a.e(f"v_lshlrev_b32 v{t6}, 8, v{t6}")
    a.e(f"v_and_b32 v{t7}, 1, v{g}")
    a.e(f"v_lshl_add_u32 v{t6}, v{t7}, 5, v{t6}")
    a.e(f"v_lshl_add_u32 v{t6}, v{c4}, 3, v{t6}")
    a.e(f"v_add_u32 v{t6}, {VRING}, v{t6}")
    for db in range(4):
        a.e(f"v_xor_b32 v{t7}, {db}, v{r}")
        a.e(f"v_lshl_add_u32 v{vVa+db}, v{t7}, 6, v{t6}")
        a.e(f"v_add_u32 v{vVb+db}, 0x10000, v{vVa+db}")
    a.e(f"v_lshl_add_u32 v{t6}, v{t5}, 3, v{r}")
    a.e(f"v_lshlrev_b32 v{t6}, 8, v{t6}")
    a.e(f"v_and_b32 v{t7}, 1, v{g}")
    a.e(f"v_lshl_add_u32 v{t6}, v{t7}, 5, v{t6}")
    a.e(f"v_and_b32 v{t7}, 1, v{c4}")
    a.e(f"v_lshl_add_u32 v{t6}, v{t7}, 4, v{t6}")
    a.e(f"v_lshrrev_b32 v{t7}, 1, v{c4}")
    a.e(f"v_lshl_add_u32 v{t6}, v{t7}, 3, v{t6}")
    a.e(f"v_add_u32 v{t6}, {WBASE}, v{t6}")
    for db in range(4):
        a.e(f"v_xor_b32 v{t7}, {db}, v{r}")
        a.e(f"v_lshl_add_u32 v{vWa+db}, v{t7}, 6, v{t6}")
    a.L = earlyL
    a.e(f"s_lshl_b32 s54, s{sW}, 3")
    a.e(f"v_add_u32 v{t5}, s54, v{g}")
    a.e(f"v_and_b32 v{t6}, 15, v{vLane}")
    a.e(f"v_and_b32 v{t7}, 15, v{t5}")
    a.e(f"v_xor_b32 v{t7}, v{t7}, v{t6}")
    a.e(f"v_lshlrev_b32 v{t7}, 4, v{t7}")
    a.e(f"v_lshl_add_u32 v{vDK0}, v{t5}, 8, v{t7}")
    a.e(f"v_add_u32 v{t7}, 4, v{t5}")
    a.e(f"v_and_b32 v{t7}, 15, v{t7}")
    a.e(f"v_xor_b32 v{t7}, v{t7}, v{t6}")
    a.e(f"v_lshlrev_b32 v{t7}, 4, v{t7}")
    a.e(f"v_lshl_add_u32 v{vDK1}, v{t5}, 8, v{t7}")
    a.e(f"v_and_b32 v{t7}, 3, v{t5}")
    a.e(f"v_lshlrev_b32 v{t7}, 2, v{t7}")
    a.e(f"v_xor_b32 v{t7}, v{t7}, v{t6}")
    a.e(f"v_lshlrev_b32 v{t7}, 4, v{t7}")
    a.e(f"v_lshl_add_u32 v{vDV}, v{t5}, 8, v{t7}")
    a.e(f"v_lshl_add_u32 v{vDW0}, v{t5}, 13, v{t7}")
    a.e(f"v_add_u32 v{vDW1}, 31744, v{vDW0}")
    a.L = lateL
    a.e(f"s_lshl_b32 s54, s{sW}, 5")
    a.e(f"v_add_u32 v{t5}, s54, v{q}")
    a.e(f"v_lshlrev_b32 v{t5}, 10, v{t5}")
    a.e(f"v_lshl_add_u32 v{vX}, v{hh}, 4, v{t5}")
    a.e(f"s_lshl_b32 s54, s{sW}, 18")
    a.e(f"v_lshlrev_b32 v{t5}, 4, v{vLane}")
    a.e(f"v_add_u32 v{vOo}, s54, v{t5}")
    a.L = earlyL
    a.e(f"s_lshl_b32 s54, s{sW}, 11")
    a.e(f"s_add_u32 s{sM0K}, s54, {KRING}")
    a.e(f"s_add_u32 s{sM0V}, s54, {VRING}")
    a.e(f"s_add_u32 s{sM0W}, s54, {WBASE}")
    a.e(f"s_mov_b32 s{sTile}, 0"); a.e(f"s_mov_b32 s{sTileV}, 0"); a.e(f"s_mov_b32 s{sWqOff}, 0")
    WSLOT = [VRING + 3 * 16384, WBUF, WBUF + 16384]
    XBUF = [KRING + 2 * 16384, VRING + 1 * 16384]
    vXd = 48
    vXa = 52
    vXf = vO
    sXoff = 43
    a.e(f"v_and_b32 v{t6}, 15, v{vLane}")
    a.e(f"v_xor_b32 v{t6}, v{t6}, v{g}")
    a.e(f"s_lshl_b32 s54, s{sW}, 15")
    for i in range(4):
        a.e(f"v_xor_b32 v{t7}, {4*i}, v{t6}")
        a.e(f"v_lshrrev_b32 v{t5}, 3, v{t7}")
        a.e(f"v_lshl_add_u32 v{t5}, v{g}, 1, v{t5}")
        a.e(f"v_lshlrev_b32 v{t5}, 10, v{t5}")
        a.e(f"v_and_b32 v{t7}, 7, v{t7}")
        a.e(f"v_lshl_add_u32 v{t5}, v{t7}, 4, v{t5}")
        a.e(f"v_add_u32 v{t5}, {8192*i - 1024*i}, v{t5}")
        a.e(f"v_add_u32 v{vXd+i}, s54, v{t5}")
    a.L = lateL
    a.e(f"v_lshrrev_b32 v{t5}, 1, v{q}")
    a.e(f"v_and_b32 v{t6}, 1, v{q}")
    a.e(f"v_lshl_add_u32 v{t6}, v{t6}, 3, v{hh}")
    a.e(f"v_xor_b32 v{t6}, v{t6}, v{t5}")
    a.e(f"s_lshl_b32 s54, s{sW}, 12")
    a.e(f"v_lshlrev_b32 v{t5}, 8, v{t5}")
    a.e(f"v_add_u32 v{t5}, s54, v{t5}")
    a.e(f"v_add_u32 v{t5}, 32768, v{t5}")
    for s_ in range(4):
        a.e(f"v_xor_b32 v{t7}, {2*s_}, v{t6}")
        a.e(f"v_lshl_add_u32 v{vXa+s_}, v{t7}, 4, v{t5}")
    a.L = earlyL
    a.e(f"s_lshl_b32 s54, s{sW}, 12")
    ROT = os.environ.get("ROT")
    if ROT:
        a.e(f"s_and_b32 s55, s{sB if ROT=='b' else sH}, 7")
        a.e(f"s_lshl_b32 s{sXoff}, s55, 7")
        a.e(f"s_lshl_b32 s{sWqOff}, s55, 19")
    else:
        a.e(f"s_mov_b32 s{sXoff}, 0")
    a.e(f"s_mov_b32 s63, s54")
    a.L.extend(srdL)
    def xload(c):
        a.e(f"s_add_u32 m0, s63, {XBUF[c%2]}")
        a.e("s_nop 0")
        for i in range(4):
            sq = a.vm(f"buffer_load_dwordx4 v{vXd+i}, s[{SX}:{SX+3}], s{sXoff} offen offset:{i*1024} lds")
        a.e(f"s_add_u32 s{sXoff}, s{sXoff}, 128")
        a.e(f"s_and_b32 s{sXoff}, s{sXoff}, 1023")
        return sq
    def wload(c):
        sq = dma_tile(a, SWQ, vDW0, vDW1, sWqOff, sM0W, WSLOT[c % 3] - WBASE, nt=False)
        a.e(f"s_add_u32 s{sWqOff}, s{sWqOff}, 524288")
        a.e(f"s_and_b32 s{sWqOff}, s{sWqOff}, 0x3fffff")
        return sq
    def kpart(slot):
        sq = dma_tile(a, SK, vDK0, vDK1, sTile, sM0K, slot * 16384); a.e(f"s_add_u32 s{sTile}, s{sTile}, 16384"); return sq
    def vpart(slot):
        sq = dma_tile(a, SV, vDV, vDV, sTileV, sM0V, slot * 16384); a.e(f"s_add_u32 s{sTileV}, s{sTileV}, 16384"); return sq
    kvparts = {1: lambda: kpart(0), 3: lambda: kpart(1), 5: lambda: vpart(0), 7: lambda: kpart(2)}
    xs = {}
    for c in range(2):
        wload(c); xs[c] = xload(c)
        if c == 0: a.e("s_barrier")
        if c == int(os.environ.get("QPF", "1")):
            a.e("s_lshl_b32 s54, s2, 14"); a.e(f"s_lshl_b32 s55, s{sW}, 11"); a.e("s_add_u32 s54, s54, s55")
            a.e("s_add_u32 s8, s50, s54"); a.e("s_addc_u32 s9, s51, 0"); a.e("s_mov_b32 s10, 2048"); a.e("s_mov_b32 s11, 0x00020000")
            a.e(f"v_lshlrev_b32 v{vP+12}, 4, v{vLane}")
            a.vm(f"buffer_load_dwordx4 {vr(vP,4)}, v{vP+12}, s[8:11], 0 offen")
            a.vm(f"buffer_load_dwordx4 {vr(vP+4,4)}, v{vP+12}, s[8:11], 0 offen offset:1024")
            a.e("s_lshl_b32 s54, s2, 13"); a.e(f"s_lshl_b32 s55, s{sW}, 10"); a.e("s_add_u32 s54, s54, s55")
            a.e("s_add_u32 s8, s44, s54"); a.e("s_addc_u32 s9, s45, 0"); a.e("s_mov_b32 s10, 1024")
            a.vm(f"buffer_load_dwordx4 {vr(vP+8,4)}, v{vP+12}, s[8:11], 0 offen")
    a.L.extend(lateL)
    pool = FragPool()
    QA = vS[0]
    kvseq = {}
    for c in range(8):
        a.c(f"-- qproj chunk {c}")
        a.wait_vm(xs[c])
        if os.environ.get("QST"): stamp(a)
        a.e("s_barrier")
        if os.environ.get("QST") and c < 2: stamp(a)
        for s_ in range(4):
            xq = a.ds(f"ds_read_b128 {vr(vXf+4*s_,4)}, v{vXa+s_} offset:{XBUF[c%2]-KRING-32768}")
        items = [(s, db) for s in range(4) for db in range(4)]
        st = {}
        def rd(j):
            s, db = items[j]
            rr = pool.get()
            base = (WSLOT[c % 3] - WBASE) + s * 4096
            a.ds(f"ds_read_b64_tr_b16 {vr(rr,2)}, v{vWa+db} offset:{base}")
            seq = a.ds(f"ds_read_b64_tr_b16 {vr(rr+2,2)}, v{vWa+db} offset:{base+1024}")
            st[j] = (rr, seq)
        PF = NF - 1
        for x in range(PF): rd(x)
        a.wait_ds(xq)
        if c + 2 < 8: wload(c + 2); xs[c + 2] = xload(c + 2)
        if c in kvparts: kvseq[c] = kvparts[c]()
        for j, (s, db) in enumerate(items):
            rr, seq = st[j]
            a.wait_ds(seq)
            acc = QA + db * 16
            cin = "0" if (c == 0 and s == 0) else vr(acc, 16)
            a.e(f"v_mfma_f32_32x32x16_bf16 {vr(acc,16)}, {vr(rr,4)}, {vr(vXf+4*s,4)}, {cin}")
            if j + PF < len(items): rd(j + PF)
    stamp(a)
    a.e("s_nop 7"); a.e("s_nop 7")
    for db in range(4):
        for j in range(8):
            a.e(f"v_cvt_pk_bf16_f32 v{vQ+db*8+j}, v{QA+db*16+2*j}, v{QA+db*16+2*j+1}")
    for i in range(64): a.e(f"v_mov_b32 v{vO+i}, 0")
    a.e(f"v_mov_b32 v{vM}, 0xff800000")
    a.e(f"s_mov_b32 s{sThr}, {f32hex(8.0/SCALE)}"); a.e(f"s_mov_b32 s{sFlag}, 0")
    a.e(f"v_mov_b32 v{vLs}, 0")
    attn_main(a, pool, {0: kvseq[1], 1: kvseq[3], 2: kvseq[7]}, {0: kvseq[5]})
    stamp(a)
    a.e(f"v_mov_b32 v{vT1}, v{vLs}")
    a.e("s_nop 1")
    a.e(f"v_permlane32_swap_b32 v{vLs}, v{vT1}")
    a.e(f"v_add_f32 v{vLs}, v{vLs}, v{vT1}")
    a.e(f"v_rcp_f32 v{vAl}, v{vLs}")
    a.e("s_nop 7"); a.e("s_nop 7")
    a.e("s_mov_b32 s54, 4096")
    for db in range(4):
        for u in range(2):
            base = vO + db * 16 + 8 * u
            for j in range(8):
                a.e(f"v_mul_f32 v{base+j}, v{base+j}, v{vAl}")
            dst = vP + (db * 2 + u) % 4 * 4
            for j in range(4):
                a.e(f"v_cvt_pk_bf16_f32 v{dst+j}, v{base+2*j}, v{base+2*j+1}")
            idx = db * 2 + u
            so = "0" if idx < 4 else "s54"
            a.e(f"buffer_store_dwordx4 {vr(dst,4)}, v{vOo}, s[{SO}:{SO+3}], {so} offen offset:{(idx%4)*1024}{os.environ.get('OST','')}")
    a.e("s_waitcnt vmcnt(0)")
    stamp(a); stamp(a)
    stamp_store(a)
    a.lab("L_attn_done")
    a.e("s_endpgm")
    for x in RARE: a.e(x)

def gen_gemm(a):
    a.lab("oproj_kernel")
    vL = 1; vBo0 = 2; vBo1 = 3; vD = 4; vA0 = 5; vA1 = 6; vt0 = 7; vt1 = 8; vt2 = 9; vRed = 10; vOut = 11
    vB = 16
    vAcc = 112
    vFr = 176
    NFR = 8
    SOf = 12; SWo = 16; SOut = 20
    sWv = 34; sCh = 36; sWoOff = 37; sTmp = 38
    a.e("s_cmp_ge_u32 s2, 256")
    a.e("s_cbranch_scc1 L_gemm_done")
    a.e("s_load_dwordx4 s[44:47], s[0:1], 32")
    a.e("s_load_dwordx2 s[52:53], s[0:1], 56")
    if os.environ.get("MAPB"):
        a.e("s_and_b32 s3, s2, 7"); a.e("s_lshl_b32 s3, s3, 2"); a.e("s_bfe_u32 s33, s2, 0x20003"); a.e("s_add_u32 s3, s3, s33")
        a.e("s_lshr_b32 s33, s2, 5")
    elif os.environ.get("MAP2"):
        a.e("s_bfe_u32 s3, s2, 0x20001"); a.e("s_lshl_b32 s3, s3, 3"); a.e("s_lshr_b32 s33, s2, 5"); a.e("s_add_u32 s3, s3, s33")
        a.e("s_and_b32 s33, s2, 1"); a.e("s_lshl_b32 s33, s33, 2"); a.e("s_bfe_u32 s54, s2, 0x20003"); a.e("s_add_u32 s33, s33, s54")
    else:
        a.e("s_lshr_b32 s3, s2, 6"); a.e("s_lshl_b32 s3, s3, 3"); a.e("s_and_b32 s33, s2, 7"); a.e("s_add_u32 s3, s3, s33")
        a.e("s_bfe_u32 s33, s2, 0x30003")
    a.e(f"v_lshrrev_b32 v{vt0}, 6, v0")
    a.e(f"v_and_b32 v{vL}, 63, v0")
    a.e("s_nop 0")
    a.e(f"v_readfirstlane_b32 s{sWv}, v{vt0}")
    a.e("s_waitcnt lgkmcnt(0)")
    a.e("s_lshl_b32 s54, s3, 19"); a.e(f"s_lshl_b32 s55, s{sWv}, 16"); a.e("s_add_u32 s54, s54, s55")
    a.e(f"s_add_u32 s{SOf}, s52, s54"); a.e(f"s_addc_u32 s{SOf+1}, s53, 0")
    a.e(f"s_sub_u32 s{SOf+2}, 16777216, s54"); a.e(f"s_mov_b32 s{SOf+3}, 0x00020000")
    a.e(f"s_lshl_b32 s54, s{sWv}, 20"); a.e("s_lshl_b32 s55, s33, 7"); a.e("s_add_u32 s54, s54, s55")
    a.e(f"s_add_u32 s{SWo}, s44, s54"); a.e(f"s_addc_u32 s{SWo+1}, s45, 0")
    a.e(f"s_sub_u32 s{SWo+2}, 4194304, s54"); a.e(f"s_mov_b32 s{SWo+3}, 0x00020000")
    a.e("s_lshl_b32 s54, s3, 16"); a.e("s_add_u32 s54, s54, s55")
    a.e(f"s_add_u32 s{SOut}, s46, s54"); a.e(f"s_addc_u32 s{SOut+1}, s47, 0")
    a.e(f"s_sub_u32 s{SOut+2}, 2097152, s54"); a.e(f"s_mov_b32 s{SOut+3}, 0x00020000")
    a.e(f"v_lshlrev_b32 v{vBo0}, 4, v{vL}")
    a.e(f"v_add_u32 v{vBo1}, 262144, v{vBo0}")
    a.e(f"v_lshrrev_b32 v{vt0}, 3, v{vL}")
    a.e(f"v_and_b32 v{vt1}, 7, v{vL}")
    a.e(f"v_bfe_u32 v{vt2}, v{vL}, 4, 1")
    a.e(f"v_lshlrev_b32 v{vt2}, 2, v{vt2}")
    a.e(f"v_xor_b32 v{vt1}, v{vt1}, v{vt2}")
    a.e(f"v_lshlrev_b32 v{vt1}, 4, v{vt1}")
    a.e(f"v_lshl_add_u32 v{vD}, v{vt0}, 10, v{vt1}")
    a.e(f"v_lshrrev_b32 v{vt0}, 5, v{vL}")
    a.e(f"v_bfe_u32 v{vt1}, v{vL}, 2, 2")
    a.e(f"v_lshl_add_u32 v{vt0}, v{vt0}, 2, v{vt1}")
    a.e(f"v_lshlrev_b32 v{vt0}, 7, v{vt0}")
    a.e(f"v_bfe_u32 v{vt2}, v{vL}, 4, 1")
    a.e(f"v_lshl_add_u32 v{vt0}, v{vt2}, 5, v{vt0}")
    a.e(f"v_and_b32 v{vt2}, 3, v{vL}")
    a.e(f"v_lshl_add_u32 v{vt0}, v{vt2}, 3, v{vt0}")
    a.e(f"s_mul_i32 s54, s{sWv}, 24576")
    a.e(f"v_add_u32 v{vt0}, s54, v{vt0}")
    a.e(f"v_lshrrev_b32 v{vt1}, 1, v{vt1}")
    a.e(f"v_lshl_add_u32 v{vA0}, v{vt1}, 6, v{vt0}")
    a.e(f"v_xor_b32 v{vt1}, 1, v{vt1}")
    a.e(f"v_lshl_add_u32 v{vA1}, v{vt1}, 6, v{vt0}")
    a.e(f"s_mov_b32 s{sCh}, 0"); a.e(f"s_mov_b32 s{sWoOff}, 0")
    a.e(f"s_mov_b32 s39, s54")
    def load_chunk(buf):
        for mb in range(2):
            for s in range(4):
                if os.environ.get("NOB"): continue
                a.e(f"buffer_load_dwordx4 {vr(vB+buf*32+mb*16+s*4,4)}, v{vBo0 if mb==0 else vBo1}, s[{SOf}:{SOf+3}], s{sCh} offen offset:{s*1024}{os.environ.get('OLD','')}")
        a.e(f"s_add_u32 s{sCh}, s{sCh}, 4096")
        for i in range(8):
            a.e(f"s_add_u32 m0, s39, {buf*8192+i*1024}")
            a.e(f"s_add_u32 s{sTmp}, s{sWoOff}, {i*8192}")
            if not os.environ.get("NOA"): a.e(f"buffer_load_dwordx4 v{vD}, s[{SWo}:{SWo+3}], s{sTmp} offen{os.environ.get('WLD','')} lds")
        a.e(f"s_add_u32 s{sWoOff}, s{sWoOff}, 65536")
    load_chunk(0); load_chunk(1)
    pi = [0]
    def getf():
        r = vFr + 4 * (pi[0] % NFR); pi[0] += 1; return r
    for ch in range(16):
        buf = ch % 3
        a.c(f"-- chunk {ch}")
        if ch + 2 < 16:
            load_chunk((ch + 2) % 3)
            a.e("s_waitcnt vmcnt(32)")
        elif ch + 1 < 16:
            a.e("s_waitcnt vmcnt(16)")
        else:
            a.e("s_waitcnt vmcnt(0)")
        items = [(s, nb) for s in range(4) for nb in range(2)]
        st = {}
        def rd(j):
            s, nb = items[j]
            rr = getf()
            base = buf * 8192 + 16 * s * 128
            a.ds(f"ds_read_b64_tr_b16 {vr(rr,2)}, v{vA0 if nb==0 else vA1} offset:{base}")
            seq = a.ds(f"ds_read_b64_tr_b16 {vr(rr+2,2)}, v{vA0 if nb==0 else vA1} offset:{base+1024}")
            st[j] = (rr, seq)
        PF = 4
        for x in range(PF): rd(x)
        for j, (s, nb) in enumerate(items):
            rr, seq = st[j]
            a.wait_ds(seq)
            for mb in range(2):
                acc = vAcc + (nb * 2 + mb) * 16
                cin = "0" if (ch == 0 and s == 0) else vr(acc, 16)
                a.e(f"v_mfma_f32_32x32x16_bf16 {vr(acc,16)}, {vr(rr,4)}, {vr(vB+buf*32+mb*16+s*4,4)}, {cin}")
            if j + PF < len(items): rd(j + PF)
    a.e("s_nop 7"); a.e("s_nop 7")
    a.e("s_barrier")
    a.e(f"s_lshl_b32 s54, s{sWv}, 14")
    a.e(f"v_lshlrev_b32 v{vt0}, 4, v{vL}")
    a.e(f"v_add_u32 v{vRed}, s54, v{vt0}")
    for qd in range(16):
        a.e(f"ds_write_b128 v{vRed}, {vr(vAcc+qd*4,4)} offset:{qd*1024}")
    a.e("s_waitcnt lgkmcnt(0)")
    a.e("s_barrier")
    a.e(f"s_lshl_b32 s54, s{sWv}, 12")
    a.e(f"v_add_u32 v{vRed}, s54, v{vt0}")
    for src in range(4):
        for qd in range(4):
            a.e(f"ds_read_b128 {vr(vB+src*16+qd*4,4)}, v{vRed} offset:{src*16384+qd*1024}")
    a.e("s_waitcnt lgkmcnt(0)")
    for i in range(16):
        a.e(f"v_add_f32 v{vB+i}, v{vB+i}, v{vB+16+i}")
        a.e(f"v_add_f32 v{vB+32+i}, v{vB+32+i}, v{vB+48+i}")
    for i in range(16):
        a.e(f"v_add_f32 v{vB+i}, v{vB+i}, v{vB+32+i}")
    a.e(f"s_and_b32 s54, s{sWv}, 1"); a.e("s_lshl_b32 s54, s54, 15")
    a.e(f"s_lshr_b32 s55, s{sWv}, 1"); a.e("s_lshl_b32 s55, s55, 6"); a.e("s_add_u32 s54, s54, s55")
    a.e(f"v_and_b32 v{vt1}, 31, v{vL}")
    a.e(f"v_lshlrev_b32 v{vt1}, 10, v{vt1}")
    a.e(f"v_lshrrev_b32 v{vt2}, 5, v{vL}")
    a.e(f"v_lshl_add_u32 v{vt1}, v{vt2}, 3, v{vt1}")
    a.e(f"v_add_u32 v{vOut}, s54, v{vt1}")
    for q4 in range(4):
        a.e(f"v_cvt_pk_bf16_f32 v{vB+64+2*q4}, v{vB+4*q4}, v{vB+4*q4+1}")
        a.e(f"v_cvt_pk_bf16_f32 v{vB+64+2*q4+1}, v{vB+4*q4+2}, v{vB+4*q4+3}")
        a.e(f"buffer_store_dwordx2 {vr(vB+64+2*q4,2)}, v{vOut}, s[{SOut}:{SOut+3}], 0 offen offset:{q4*16}")
    a.lab("L_gemm_done")
    a.e("s_endpgm")

def gen_gemm2(a):
    a.lab("oproj_kernel")
    vL = 1; vBo0 = 2; vBo1 = 3; vD = 4; vA0 = 5; vA1 = 6; vt0 = 7; vt1 = 8; vt2 = 9; vRed = 10; vOut = 11
    NB = 5; PFD = 4
    vB = 16
    vAcc = 96
    vFr = 160
    NFR = 8
    SOf = 12; SWo = 16; SOut = 20
    sWv = 34; sCh = 36; sWoOff = 37; sTmp = 38
    a.e("s_cmp_ge_u32 s2, 256")
    a.e("s_cbranch_scc1 L_gemm_done")
    a.e("s_load_dwordx4 s[44:47], s[0:1], 32")
    a.e("s_load_dwordx2 s[52:53], s[0:1], 56")
    a.e("s_lshr_b32 s3, s2, 6"); a.e("s_lshl_b32 s3, s3, 3"); a.e("s_and_b32 s33, s2, 7"); a.e("s_add_u32 s3, s3, s33")
    a.e("s_bfe_u32 s33, s2, 0x30003")
    if os.environ.get("FIXT") in ("m", "mn"): a.e("s_mov_b32 s3, 0")
    if os.environ.get("FIXT") in ("n", "mn"): a.e("s_mov_b32 s33, 0")
    a.e(f"v_lshrrev_b32 v{vt0}, 6, v0")
    a.e(f"v_and_b32 v{vL}, 63, v0")
    a.e("s_nop 0")
    a.e(f"v_readfirstlane_b32 s{sWv}, v{vt0}")
    a.e(f"v_lshlrev_b32 v{vBo0}, 4, v{vL}")
    a.e(f"v_add_u32 v{vBo1}, 262144, v{vBo0}")
    a.e(f"v_lshrrev_b32 v{vt0}, 3, v{vL}")
    a.e(f"v_and_b32 v{vt1}, 7, v{vL}")
    a.e(f"v_bfe_u32 v{vt2}, v{vL}, 4, 1")
    a.e(f"v_lshlrev_b32 v{vt2}, 2, v{vt2}")
    a.e(f"v_xor_b32 v{vt1}, v{vt1}, v{vt2}")
    a.e(f"v_lshlrev_b32 v{vt1}, 4, v{vt1}")
    a.e(f"v_lshl_add_u32 v{vD}, v{vt0}, 10, v{vt1}")
    a.e("s_waitcnt lgkmcnt(0)")
    a.e("s_lshl_b32 s54, s3, 19"); a.e(f"s_lshl_b32 s55, s{sWv}, 15"); a.e("s_add_u32 s54, s54, s55")
    a.e(f"s_add_u32 s{SOf}, s52, s54"); a.e(f"s_addc_u32 s{SOf+1}, s53, 0")
    a.e(f"s_sub_u32 s{SOf+2}, 16777216, s54"); a.e(f"s_mov_b32 s{SOf+3}, 0x00020000")
    a.e(f"s_lshl_b32 s54, s{sWv}, 19"); a.e("s_lshl_b32 s55, s33, 7"); a.e("s_add_u32 s54, s54, s55")
    a.e(f"s_add_u32 s{SWo}, s44, s54"); a.e(f"s_addc_u32 s{SWo+1}, s45, 0")
    a.e(f"s_sub_u32 s{SWo+2}, 4194304, s54"); a.e(f"s_mov_b32 s{SWo+3}, 0x00020000")
    a.e(f"s_mov_b32 s{sCh}, 0"); a.e(f"s_mov_b32 s{sWoOff}, 0")
    a.e(f"s_mul_i32 s39, s{sWv}, {NB*4096}")
    def load_chunk(buf):
        for i in range(4):
            a.e(f"s_add_u32 m0, s39, {buf*4096+i*1024}")
            a.e(f"s_add_u32 s{sTmp}, s{sWoOff}, {i*8192}")
            a.e(f"buffer_load_dwordx4 v{vD}, s[{SWo}:{SWo+3}], s{sTmp} offen lds")
        a.e(f"s_add_u32 s{sWoOff}, s{sWoOff}, 32768")
        for mb in range(2):
            for s_ in range(2):
                a.e(f"buffer_load_dwordx4 {vr(vB+buf*16+mb*8+s_*4,4)}, v{vBo0 if mb==0 else vBo1}, s[{SOf}:{SOf+3}], s{sCh} offen offset:{s_*1024}")
        a.e(f"s_add_u32 s{sCh}, s{sCh}, 2048")
    for c in range(PFD): load_chunk(c)
    a.e("s_lshl_b32 s54, s3, 16"); a.e("s_lshl_b32 s55, s33, 7"); a.e("s_add_u32 s54, s54, s55")
    a.e(f"s_add_u32 s{SOut}, s46, s54"); a.e(f"s_addc_u32 s{SOut+1}, s47, 0")
    a.e(f"s_sub_u32 s{SOut+2}, 2097152, s54"); a.e(f"s_mov_b32 s{SOut+3}, 0x00020000")
    a.e(f"v_lshrrev_b32 v{vt0}, 5, v{vL}")
    a.e(f"v_bfe_u32 v{vt1}, v{vL}, 2, 2")
    a.e(f"v_lshl_add_u32 v{vt0}, v{vt0}, 2, v{vt1}")
    a.e(f"v_lshlrev_b32 v{vt0}, 7, v{vt0}")
    a.e(f"v_bfe_u32 v{vt2}, v{vL}, 4, 1")
    a.e(f"v_lshl_add_u32 v{vt0}, v{vt2}, 5, v{vt0}")
    a.e(f"v_and_b32 v{vt2}, 3, v{vL}")
    a.e(f"v_lshl_add_u32 v{vt0}, v{vt2}, 3, v{vt0}")
    a.e(f"v_add_u32 v{vt0}, s39, v{vt0}")
    a.e(f"v_lshrrev_b32 v{vt1}, 1, v{vt1}")
    a.e(f"v_lshl_add_u32 v{vA0}, v{vt1}, 6, v{vt0}")
    a.e(f"v_xor_b32 v{vt1}, 1, v{vt1}")
    a.e(f"v_lshl_add_u32 v{vA1}, v{vt1}, 6, v{vt0}")
    pi = [0]
    def getf():
        r = vFr + 4 * (pi[0] % NFR); pi[0] += 1; return r
    NCH = 16
    for ch in range(NCH):
        buf = ch % NB
        a.c(f"-- chunk {ch}")
        if ch + PFD < NCH: load_chunk((ch + PFD) % NB)
        rem = min(PFD, NCH - 1 - ch)
        a.e(f"s_waitcnt vmcnt({8*rem})")
        items = [(s_, nb) for s_ in range(2) for nb in range(2)]
        st = {}
        for j, (s_, nb) in enumerate(items):
            rr = getf()
            base = buf * 4096 + s_ * 2048
            a.ds(f"ds_read_b64_tr_b16 {vr(rr,2)}, v{vA0 if nb==0 else vA1} offset:{base}")
            seq = a.ds(f"ds_read_b64_tr_b16 {vr(rr+2,2)}, v{vA0 if nb==0 else vA1} offset:{base+1024}")
            st[j] = (rr, seq)
        for j, (s_, nb) in enumerate(items):
            rr, seq = st[j]
            a.wait_ds(seq)
            for mb in range(2):
                acc = vAcc + (nb * 2 + mb) * 16
                cin = "0" if (ch == 0 and s_ == 0) else vr(acc, 16)
                a.e(f"v_mfma_f32_32x32x16_bf16 {vr(acc,16)}, {vr(rr,4)}, {vr(vB+buf*16+mb*8+s_*4,4)}, {cin}")
    a.e("s_nop 7"); a.e("s_nop 7")
    a.e("s_barrier")
    a.e(f"s_lshl_b32 s54, s{sWv}, 14")
    a.e(f"v_lshlrev_b32 v{vt0}, 4, v{vL}")
    a.e(f"v_add_u32 v{vRed}, s54, v{vt0}")
    for qd in range(16):
        a.e(f"ds_write_b128 v{vRed}, {vr(vAcc+qd*4,4)} offset:{qd*1024}")
    a.e("s_waitcnt lgkmcnt(0)")
    a.e("s_barrier")
    a.e(f"s_lshl_b32 s54, s{sWv}, 11")
    a.e(f"v_add_u32 v{vRed}, s54, v{vt0}")
    a.e(f"v_add_u32 v{vt1}, 0x10000, v{vRed}")
    for src in range(8):
        for qd in range(2):
            a.e(f"ds_read_b128 {vr(vB+src*8+qd*4,4)}, v{vRed if src < 4 else vt1} offset:{(src%4)*16384+qd*1024}")
    a.e("s_waitcnt lgkmcnt(0)")
    for i in range(8):
        for p_ in range(4):
            a.e(f"v_add_f32 v{vB+16*p_+i}, v{vB+16*p_+i}, v{vB+16*p_+8+i}")
    for i in range(8):
        a.e(f"v_add_f32 v{vB+i}, v{vB+i}, v{vB+16+i}")
        a.e(f"v_add_f32 v{vB+32+i}, v{vB+32+i}, v{vB+48+i}")
    for i in range(8):
        a.e(f"v_add_f32 v{vB+i}, v{vB+i}, v{vB+32+i}")
    a.e(f"s_bfe_u32 s54, s{sWv}, 0x10001"); a.e("s_lshl_b32 s54, s54, 15")
    a.e(f"s_lshr_b32 s55, s{sWv}, 2"); a.e("s_lshl_b32 s55, s55, 6"); a.e("s_add_u32 s54, s54, s55")
    a.e(f"s_and_b32 s55, s{sWv}, 1"); a.e("s_lshl_b32 s55, s55, 5"); a.e("s_add_u32 s54, s54, s55")
    a.e(f"v_and_b32 v{vt1}, 31, v{vL}")
    a.e(f"v_lshlrev_b32 v{vt1}, 10, v{vt1}")
    a.e(f"v_lshrrev_b32 v{vt2}, 5, v{vL}")
    a.e(f"v_lshl_add_u32 v{vt1}, v{vt2}, 3, v{vt1}")
    a.e(f"v_add_u32 v{vOut}, s54, v{vt1}")
    for q4 in range(2):
        a.e(f"v_cvt_pk_bf16_f32 v{vB+64+2*q4}, v{vB+4*q4}, v{vB+4*q4+1}")
        a.e(f"v_cvt_pk_bf16_f32 v{vB+64+2*q4+1}, v{vB+4*q4+2}, v{vB+4*q4+3}")
        a.e(f"buffer_store_dwordx2 {vr(vB+64+2*q4,2)}, v{vOut}, s[{SOut}:{SOut+3}], 0 offen offset:{q4*16}")
    a.lab("L_gemm_done")
    a.e("s_endpgm")

HDR = """; Kernarg layout for this problem (64 bytes, ptrs only, base s[0:1]):
;   offset   0: d_in[0] x  shape=(8, 256, 512) dtype=bfloat16
;   offset   8: d_in[1] k_cache  shape=(8, 32, 1024, 128) dtype=bfloat16
;   offset  16: d_in[2] v_cache  shape=(8, 32, 1024, 128) dtype=bfloat16
;   offset  24: d_in[3] wq  shape=(512, 4096) dtype=bfloat16
;   offset  32: d_in[4] wo  shape=(4096, 512) dtype=bfloat16
;   offset  40: d_out     shape=(8, 256, 512) dtype=bfloat16
;   offset  48: d_debug   256 bytes
; @launch kernel=attn_kernel grid=(256,1,1) block=(512,1,1) lds=163840
; @launch kernel=oproj_kernel grid=(256,1,1) block=(BLK2,1,1) lds=LDS2
.amdgcn_target "amdgcn-amd-amdhsa--gfx950"
.text
"""
def kd(name, nv, ns=100):
    return f""".amdhsa_kernel {name}
  .amdhsa_next_free_vgpr {nv}
  .amdhsa_next_free_sgpr {ns}
  .amdhsa_accum_offset {nv}
  .amdhsa_group_segment_fixed_size 0
  .amdhsa_kernarg_size 64
  .amdhsa_user_sgpr_count 2
  .amdhsa_user_sgpr_kernarg_segment_ptr 1
  .amdhsa_system_sgpr_workgroup_id_x 1
  .amdhsa_float_denorm_mode_32 3
.end_amdhsa_kernel
"""
def main():
    G2 = not os.environ.get("OLDG")
    out = HDR.replace("BLK2", "512" if G2 else "256").replace("LDS2", "163840" if G2 else "98304")
    a = A(); gen_attn(a)
    out += ".globl attn_kernel\n.p2align 8\n.type attn_kernel,@function\n" + "\n".join(a.L) + "\n"
    b = A(); (gen_gemm2 if G2 else gen_gemm)(b)
    out += ".globl oproj_kernel\n.p2align 8\n.type oproj_kernel,@function\n" + "\n".join(b.L) + "\n"
    out += '.section .rodata,"a"\n.p2align 6\n' + kd("attn_kernel", NVG1) + ".p2align 6\n" + kd("oproj_kernel", 192 if G2 else 208)
    open(sys.argv[1] if len(sys.argv) > 1 else "standalone__gqa_block_cached__near_ridge.s", "w").write(out)
main()
```

```python
import sys, math, os

class A:
    def __init__(s):
        s.L = []
        s.ds_seq = 0
        s.ds_done = 0
    def e(s, t): s.L.append("    " + t)
    def lab(s, t): s.L.append(t + ":")
    def c(s, t): s.L.append("    ; " + t)
    def ds(s, t):
        s.e(t); s.ds_seq += 1; return s.ds_seq
    def wait_ds(s, seq):
        if seq <= s.ds_done: return
        n = s.ds_seq - seq
        n = min(n, 15)
        s.e(f"s_waitcnt lgkmcnt({n})")
        s.ds_done = s.ds_seq - n
    def ds_reset(s):
        s.ds_seq = 0; s.ds_done = 0
    def vm(s, t):
        s.e(t); s.vm_seq = getattr(s, 'vm_seq', 0) + 1; return s.vm_seq
    def wait_vm(s, seq):
        n = s.vm_seq - seq
        assert n <= 63
        s.e(f"s_waitcnt vmcnt({n})")

def vr(a, n): return f"v[{a}:{a+n-1}]"

vLane = 1; vT0 = 2; vT1 = 3; vT2 = 4; vT3 = 5
vKa = 8
vVa = 16
vWa = 20
vDK0 = 24; vDK1 = 25; vDV = 26; vDW0 = 27; vDW1 = 28; vX = 29
vM = 30; vLs = 31
vQ = 32
vO = 64
vS = [128, 160]
vP = 192
vF = 208
NF = 6
vAl = 232; vMc = 233; vOo = 234; vVb = 235
NVG1 = 240
sB = 3; sH = 33; sW = 34
SX = 12; SK = 16; SV = 20; SWQ = 24; SO = 28
sC = 35
sTile = 36
sTileV = 37
sM0K = 38; sM0V = 39; sM0W = 40
sWqOff = 41
sLoop = 42
KRING = 0; VRING = 65536; WBUF = 131072; WBASE = VRING + 32768
SCALE = (128 ** -0.5) * math.log2(math.e)
import struct
def f32hex(x): return "0x%08x" % struct.unpack("<I", struct.pack("<f", x))[0]

def interleave(a, mfmas, valu, per=None):
    n = len(mfmas); tot = len(valu); done = 0
    for i, m in enumerate(mfmas):
        m()
        upto = (tot * (i + 1)) // n
        while done < upto:
            a.e(valu[done]); done += 1

class FragPool:
    def __init__(s): s.i = 0
    def get(s):
        r = vF + 4 * (s.i % NF); s.i += 1; return r

def dma_tile(a, srd, voff0, voff1, soff, m0sreg, slot_imm, nt=True):
    a.e(f"s_add_u32 m0, s{m0sreg}, {slot_imm}")
    a.e("s_nop 0")
    n = " nt" if nt else ""
    a.vm(f"buffer_load_dwordx4 v{voff0}, s[{srd}:{srd+3}], s{soff} offen{n} lds")
    return a.vm(f"buffer_load_dwordx4 v{voff1}, s[{srd}:{srd+3}], s{soff} offen offset:1024{n} lds")

def qk_ops(a, pool, slot, Sdst):
    items = [(kb, s) for kb in range(2) for s in range(8)]
    st = {}
    def rd(j):
        kb, s = items[j]
        r = pool.get()
        seq = a.ds(f"ds_read_b128 {vr(r,4)}, v{vKa+s} offset:{KRING+slot*16384+kb*8192}")
        st[j] = (r, seq)
    PF = NF - 1
    ops = []
    def mk(j):
        def f():
            if j == 0:
                for x in range(PF): rd(x)
            if j + PF < len(items) and j > 0: rd(j + PF - 1 + 0) if False else None
            kb, s = items[j]
            r, seq = st[j]
            a.wait_ds(seq)
            acc = Sdst + kb * 16
            cin = "0" if s == 0 else vr(acc, 16)
            a.e(f"v_mfma_f32_32x32x16_bf16 {vr(acc,16)}, {vr(r,4)}, {vr(vQ+4*s,4)}, {cin}")
            if j + PF < len(items): rd(j + PF)
        return f
    return [mk(j) for j in range(len(items))]

def pv_ops(a, pool, slot):
    items = [(db, kb, u) for db in range(4) for kb in range(2) for u in range(2)]
    st = {}
    def rd(j):
        db, kb, u = items[j]
        r = pool.get()
        base = slot * 16384 + (32 * kb + 16 * u) * 256
        a.ds(f"ds_read_b64_tr_b16 {vr(r,2)}, v{vVa+db} offset:{base}")
        seq = a.ds(f"ds_read_b64_tr_b16 {vr(r+2,2)}, v{vVa+db} offset:{base+2048}")
        st[j] = (r, seq)
    PF = NF - 1
    def mk(j):
        def f():
            if j == 0:
                for x in range(PF): rd(x)
            db, kb, u = items[j]
            r, seq = st[j]
            a.wait_ds(seq)
            acc = vO + db * 16
            a.e(f"v_mfma_f32_32x32x16_bf16 {vr(acc,16)}, {vr(r,4)}, {vr(vP+(kb*2+u)*4,4)}, {vr(acc,16)}")
            if j + PF < len(items): rd(j + PF)
        return f
    return [mk(j) for j in range(len(items))]

sThr = 62; sFlag = 61
RARE = []
def softmax_head(S, uid):
    v = []
    v.append(f"v_max3_f32 v{vT0}, v{S+0}, v{S+1}, v{S+2}")
    v.append(f"v_max3_f32 v{vT1}, v{S+3}, v{S+4}, v{S+5}")
    v.append(f"v_max3_f32 v{vT2}, v{S+6}, v{S+7}, v{S+8}")
    v.append(f"v_max3_f32 v{vT3}, v{S+9}, v{S+10}, v{S+11}")
    k = 12; t = 0
    T = [vT0, vT1, vT2, vT3]
    while k < 32:
        v.append(f"v_max3_f32 v{T[t]}, v{T[t]}, v{S+k}, v{S+k+1}")
        k += 2; t = (t + 1) % 4
    v.append(f"v_max3_f32 v{vT0}, v{vT0}, v{vT1}, v{vT2}")
    v.append(f"v_max_f32 v{vT0}, v{vT0}, v{vT3}")
    v.append(f"v_mov_b32 v{vT1}, v{vT0}")
    v.append("s_nop 1")
    v.append(f"v_permlane32_swap_b32 v{vT0}, v{vT1}")
    v.append(f"v_max_f32 v{vT0}, v{vT0}, v{vT1}")
    v.append(f"v_sub_f32 v{vT1}, v{vT0}, v{vM}")
    v.append(f"v_cmp_lt_f32 vcc, s{sThr}, v{vT1}")
    v.append(f"s_cbranch_vccnz L_rs1_{uid}")
    v.append(f"L_bk1_{uid}:")
    r = [f"L_rs1_{uid}:",
         f"v_max_f32 v{vT0}, v{vT0}, v{vM}",
         f"v_sub_f32 v{vT1}, v{vM}, v{vT0}",
         f"v_mul_f32 v{vT1}, s{sC}, v{vT1}",
         f"v_exp_f32 v{vAl}, v{vT1}",
         f"v_mov_b32 v{vM}, v{vT0}",
         f"v_mul_f32 v{vMc}, s{sC}, v{vT0}",
         f"s_mov_b32 s{sFlag}, 1",
         f"v_mul_f32 v{vLs}, v{vLs}, v{vAl}",
         f"s_branch L_bk1_{uid}"]
    RARE.extend(r)
    return [(x, 4, None) for x in v]

def softmax_body(S):
    v = []
    for i in range(32 + 2):
        if i < 32: v.append((f"v_fma_f32 v{S+i}, v{S+i}, s{sC}, -v{vMc}", 4, None))
        if 0 <= i - 1 < 32: v.append((f"v_exp_f32 v{S+i-1}, v{S+i-1}", 8, i - 1))
        if 0 <= i - 2 < 32: v.append((f"v_add_f32 v{vLs}, v{vLs}, v{S+i-2}", 4, None))
    return v

def rescale_check(a, uid):
    a.e(f"s_cmp_lg_u32 s{sFlag}, 0")
    a.e(f"s_cbranch_scc1 L_rs2_{uid}")
    a.lab(f"L_bk2_{uid}")
    r = [f"L_rs2_{uid}:", "s_nop 7", "s_nop 7"]
    for i in range(64): r.append(f"v_mul_f32 v{vO+i}, v{vO+i}, v{vAl}")
    r += [f"s_mov_b32 s{sFlag}, 0", "s_nop 1", f"s_branch L_bk2_{uid}"]
    RARE.extend(r)

UID = [0]
NVS = 5
class Op:
    def __init__(s, rd, mf): s.rd = rd; s.mf = mf; s.st = None
def mk_qk(a, pool, tile, Sdst):
    slot = tile % 4
    ops = []
    for kb in range(2):
        for s_ in range(8):
            def rd(kb=kb, s_=s_):
                r = pool.get()
                seq = a.ds(f"ds_read_b128 {vr(r,4)}, v{vKa+s_} offset:{KRING+slot*16384+kb*8192}")
                return (r, seq)
            def mf(st, kb=kb, s_=s_):
                r, seq = st
                a.wait_ds(seq)
                acc = Sdst + kb * 16
                cin = "0" if s_ == 0 else vr(acc, 16)
                a.e(f"v_mfma_f32_32x32x16_bf16 {vr(acc,16)}, {vr(r,4)}, {vr(vQ+4*s_,4)}, {cin}")
            ops.append(Op(rd, mf))
    return ops
def mk_pv(a, pool, tile):
    slot = tile % NVS
    ops = []
    for db in range(4):
        for kb in range(2):
            for u in range(2):
                def rd(db=db, kb=kb, u=u):
                    r = pool.get()
                    base = (slot % 4) * 16384 + (32 * kb + 16 * u) * 256
                    va = (vVa if slot < 4 else vVb) + db
                    a.ds(f"ds_read_b64_tr_b16 {vr(r,2)}, v{va} offset:{base}")
                    seq = a.ds(f"ds_read_b64_tr_b16 {vr(r+2,2)}, v{va} offset:{base+2048}")
                    return (r, seq)
                def mf(st, db=db, kb=kb, u=u):
                    r, seq = st
                    a.wait_ds(seq)
                    acc = vO + db * 16
                    cin = "0" if (tile == 0 and kb == 0 and u == 0) else vr(acc, 16)
                    a.e(f"v_mfma_f32_32x32x16_bf16 {vr(acc,16)}, {vr(r,4)}, {vr(vP+(kb*2+u)*4,4)}, {cin}")
                ops.append(Op(rd, mf))
    return ops

def attn_main(a, pool, kseq, vseq):
    PF = NF - 1
    allops = []
    plan = []
    plan.append((-1, 0, 0, 16)); allops += mk_qk(a, pool, 0, vS[0])
    for t in range(16):
        st = len(allops)
        pv = mk_pv(a, pool, t - 1) if t >= 1 else []
        qk = mk_qk(a, pool, t + 1, vS[(t + 1) % 2]) if t <= 14 else []
        allops += pv + qk
        plan.append((t, st, len(pv), len(qk)))
    plan.append((16, len(allops), 16, 0)); allops += mk_pv(a, pool, 15)
    rp = [0]
    def prefetch(upto, limit):
        while rp[0] <= upto and rp[0] < limit:
            allops[rp[0]].st = allops[rp[0]].rd(); rp[0] += 1
    def kdma(tile, half):
        if tile > 15: return
        if half == 0: a.e(f"s_add_u32 m0, s{sM0K}, {(tile%4)*16384}"); a.e("s_nop 0")
        a.vm(f"buffer_load_dwordx4 v{vDK0 if half==0 else vDK1}, s[{SK}:{SK+3}], s{sTile} offen offset:{1024*half} nt lds")
        if half == 1:
            kseq[tile] = a.vm_seq; a.e(f"s_add_u32 s{sTile}, s{sTile}, 16384")
    def vdma(tile, half):
        if tile > 15: return
        if half == 0: a.e(f"s_add_u32 m0, s{sM0V}, {(tile%NVS)*16384}"); a.e("s_nop 0")
        a.vm(f"buffer_load_dwordx4 v{vDV}, s[{SV}:{SV+3}], s{sTileV} offen offset:{1024*half} nt lds")
        if half == 1:
            vseq[tile] = a.vm_seq; a.e(f"s_add_u32 s{sTileV}, s{sTileV}, 16384")
    for pi, (t, st, npv, nqk) in enumerate(plan):
        n = npv + nqk
        nxt = plan[pi + 1] if pi + 1 < len(plan) else None
        limit = st + n + (min(PF, nxt[2]) if nxt else 0)
        if t == -1:
            a.c("---- QK(0)")
            a.wait_vm(kseq[0]); a.e("s_barrier")
            vdma(1, 0); vdma(1, 1); vdma(2, 0); vdma(2, 1); kdma(3, 0); kdma(3, 1)
            for j in range(n):
                prefetch(st + j + PF - 1 if j else st + PF - 1, limit)
                allops[st + j].mf(allops[st + j].st)
                prefetch(st + j + PF, limit)
            stamp(a)
            continue
        if t == 16:
            a.c("---- final PV")
            for j in range(n):
                prefetch(st + j + PF - 1, limit)
                allops[st + j].mf(allops[st + j].st)
                prefetch(st + j + PF, limit)
            continue
        uid = UID[0]; UID[0] += 1
        a.c(f"---- iteration t={t}")
        need = [x for x in (kseq.get(t + 1) if t <= 14 else None, vseq.get(t)) if x is not None]
        a.wait_vm(max(need))
        a.e("s_barrier")
        S = vS[t % 2]
        main = softmax_head(S, uid) + softmax_body(S)
        tot = sum(w for _, w, _ in main) + 64
        stt = {"mi": 0, "cv": 0, "cum": 0, "since": {}, "cnt": 0}
        def emit_main():
            txt, w, tag = main[stt["mi"]]; stt["mi"] += 1
            a.e(txt); stt["cum"] += w; stt["cnt"] += 1
            if tag is not None: stt["since"][tag] = stt["cnt"]
        def cvt_ready():
            j = stt["cv"]
            if j >= 16: return False
            e = stt["since"].get(2 * j + 1)
            return e is not None and stt["cnt"] > e
        def emit_cvt():
            j = stt["cv"]; stt["cv"] += 1
            a.e(f"v_cvt_pk_bf16_f32 v{vP+j}, v{S+2*j}, v{S+2*j+1}"); stt["cum"] += 4; stt["cnt"] += 1
        def wopf():
            if t != int(os.environ.get("WOPF", "10")): return
            a.e(f"s_lshl_b32 s54, s{sW}, 11"); a.e(f"s_add_u32 m0, s54, {VRING+5*16384}")
            a.e(f"v_lshlrev_b32 v{vDW0}, 4, v{vLane}"); a.e(f"v_add_u32 v{vDW0}, s54, v{vDW0}")
            a.vm(f"buffer_load_dwordx4 v{vDW0}, s[4:7], 0 offen lds")
            a.vm(f"buffer_load_dwordx4 v{vDW0}, s[4:7], 0 offen offset:1024 lds")
        dm = {9: wopf, 1: lambda: kdma(t + 4, 0), 3: lambda: kdma(t + 4, 1), 5: lambda: vdma(t + 3, 0), 7: lambda: vdma(t + 3, 1)}
        for j in range(n):
            prefetch(st + j + PF - 1, limit)
            allops[st + j].mf(allops[st + j].st)
            prefetch(st + j + PF, limit)
            if j in dm: dm[j]()
            if npv and j == npv - 1: rescale_check(a, uid)
            target = tot * (j + 1) // n
            while stt["cum"] < target:
                if j >= npv - 1 and cvt_ready(): emit_cvt()
                elif stt["mi"] < len(main): emit_main()
                else: break
        while stt["mi"] < len(main): emit_main()
        a.e("s_nop 0")
        while stt["cv"] < 16: emit_cvt()
        if not npv: a.e(f"s_mov_b32 s{sFlag}, 0")
        if t in (0, 12): stamp(a)

STAMP = os.environ.get("STAMP")
stamp_n = [0]
def stamp(a):
    if not STAMP: return
    i = stamp_n[0]; stamp_n[0] += 1
    if i >= 18: return
    rt = os.environ.get("RT") and i in (0, 7)
    a.e(f"{'s_memrealtime' if rt else 's_memtime'} s[{64+2*i}:{65+2*i}]"); a.e("s_waitcnt lgkmcnt(0)")
def stamp_store(a):
    if not STAMP: return
    a.e("s_load_dwordx2 s[56:57], s[0:1], 48"); a.e("s_waitcnt lgkmcnt(0)")
    a.e("s_mov_b32 s58, 256"); a.e("s_mov_b32 s59, 0x00020000")
    a.e("s_cmp_lg_u32 s2, 0"); a.e("s_cbranch_scc1 L_nostamp")
    a.e(f"s_cmp_lg_u32 s{sW}, 0"); a.e("s_cbranch_scc1 L_nostamp")
    a.e("v_mov_b32 v2, 0")
    for i in range(min(18,stamp_n[0])):
        a.e(f"v_mov_b32 v3, s{64+2*i}")
        a.e(f"buffer_store_dword v3, v2, s[56:59], 0 offen offset:{4*i}")
    a.lab("L_nostamp")

def gen_attn(a):
    a.lab("attn_kernel")
    a.e("s_cmp_ge_u32 s2, 256")
    a.e("s_cbranch_scc1 L_attn_done")
    stamp(a)
    a.e("s_load_dwordx4 s[44:47], s[0:1], 0")
    a.e("s_load_dwordx4 s[48:51], s[0:1], 16")
    a.e("s_load_dwordx2 s[52:53], s[0:1], 56")
    if os.environ.get("MAPB"):
        a.e(f"s_and_b32 s{sB}, s2, 7")
        a.e(f"s_lshr_b32 s{sH}, s2, 3")
    else:
        a.e(f"s_lshr_b32 s{sB}, s2, 5")
        a.e(f"s_and_b32 s{sH}, s2, 31")
    a.e(f"s_lshl_b32 s60, s{sB}, 5"); a.e(f"s_add_u32 s60, s60, s{sH}")
    a.e(f"v_lshrrev_b32 v{vT0}, 6, v0")
    a.e(f"v_and_b32 v{vLane}, 63, v0")
    a.e("s_nop 0")
    a.e(f"v_readfirstlane_b32 s{sW}, v{vT0}")
    a.e("s_load_dwordx2 s[56:57], s[0:1], 32")
    earlyL = a.L; lateL = []; srdL = []
    a.L = srdL
    a.e("s_waitcnt lgkmcnt(0)")
    a.e(f"s_lshl_b32 s54, s{sB}, 18")
    a.e(f"s_add_u32 s{SX}, s44, s54"); a.e(f"s_addc_u32 s{SX+1}, s45, 0")
    a.e(f"s_mov_b32 s{SX+2}, 262144"); a.e(f"s_mov_b32 s{SX+3}, 0x00020000")
    a.L = lateL
    if os.environ.get("KVFIX"): a.e("s_and_b32 s60, s60, 7")
    a.e("s_lshl_b32 s54, s60, 18")
    a.e(f"s_add_u32 s{SK}, s46, s54"); a.e(f"s_addc_u32 s{SK+1}, s47, 0")
    a.e(f"s_mov_b32 s{SK+2}, 262144"); a.e(f"s_mov_b32 s{SK+3}, 0x00020000")
    a.e(f"s_add_u32 s{SV}, s48, s54"); a.e(f"s_addc_u32 s{SV+1}, s49, 0")
    a.e(f"s_mov_b32 s{SV+2}, 262144"); a.e(f"s_mov_b32 s{SV+3}, 0x00020000")
    a.L = srdL
    a.e(f"s_lshl_b32 s54, s{sH}, 8")
    a.e(f"s_add_u32 s{SWQ}, s50, s54"); a.e(f"s_addc_u32 s{SWQ+1}, s51, 0")
    a.e(f"s_sub_u32 s{SWQ+2}, 4194304, s54"); a.e(f"s_mov_b32 s{SWQ+3}, 0x00020000")
    a.L = lateL
    a.e(f"s_lshl_b32 s54, s{sB}, 21"); a.e(f"s_lshl_b32 s55, s{sH}, 13"); a.e("s_add_u32 s54, s54, s55")
    a.e(f"s_add_u32 s{SO}, s52, s54"); a.e(f"s_addc_u32 s{SO+1}, s53, 0")
    a.e(f"s_sub_u32 s{SO+2}, 16777216, s54"); a.e(f"s_mov_b32 s{SO+3}, 0x00020000")
    a.e(f"s_mov_b32 s{sC}, {f32hex(SCALE)}")
    a.e("s_lshl_b32 s54, s2, 14")
    a.e("s_add_u32 s4, s56, s54"); a.e("s_addc_u32 s5, s57, 0")
    a.e("s_mov_b32 s6, 16384"); a.e("s_mov_b32 s7, 0x00020000")
    a.L = earlyL
    q, hh, g, r, c4 = 40, 41, 42, 43, 44
    t5, t6, t7 = 45, 46, 47
    a.e(f"v_and_b32 v{q}, 31, v{vLane}")
    a.e(f"v_lshrrev_b32 v{hh}, 5, v{vLane}")
    a.e(f"v_lshrrev_b32 v{g}, 4, v{vLane}")
    a.e(f"v_bfe_u32 v{r}, v{vLane}, 2, 2")
    a.e(f"v_and_b32 v{c4}, 3, v{vLane}")
    a.L = lateL
    a.e(f"v_and_b32 v{t5}, 15, v{q}")
    a.e(f"v_xor_b32 v{t5}, v{t5}, v{hh}")
    for s in range(8):
        a.e(f"v_xor_b32 v{t6}, {2*s}, v{t5}")
        a.e(f"v_lshlrev_b32 v{t6}, 4, v{t6}")
        a.e(f"v_lshl_add_u32 v{vKa+s}, v{q}, 8, v{t6}")
    a.e(f"v_lshrrev_b32 v{t5}, 1, v{g}")
    a.e(f"v_lshl_add_u32 v{t6}, v{t5}, 2, v{r}")
    a.e(f"v_lshlrev_b32 v{t6}, 8, v{t6}")
    a.e(f"v_and_b32 v{t7}, 1, v{g}")
    a.e(f"v_lshl_add_u32 v{t6}, v{t7}, 5, v{t6}")
    a.e(f"v_lshl_add_u32 v{t6}, v{c4}, 3, v{t6}")
    a.e(f"v_add_u32 v{t6}, {VRING}, v{t6}")
    for db in range(4):
        a.e(f"v_xor_b32 v{t7}, {db}, v{r}")
        a.e(f"v_lshl_add_u32 v{vVa+db}, v{t7}, 6, v{t6}")
        a.e(f"v_add_u32 v{vVb+db}, 0x10000, v{vVa+db}")
    a.e(f"v_lshl_add_u32 v{t6}, v{t5}, 3, v{r}")
    a.e(f"v_lshlrev_b32 v{t6}, 8, v{t6}")
    a.e(f"v_and_b32 v{t7}, 1, v{g}")
    a.e(f"v_lshl_add_u32 v{t6}, v{t7}, 5, v{t6}")
    a.e(f"v_and_b32 v{t7}, 1, v{c4}")
    a.e(f"v_lshl_add_u32 v{t6}, v{t7}, 4, v{t6}")
    a.e(f"v_lshrrev_b32 v{t7}, 1, v{c4}")
    a.e(f"v_lshl_add_u32 v{t6}, v{t7}, 3, v{t6}")
    a.e(f"v_add_u32 v{t6}, {WBASE}, v{t6}")
    for db in range(4):
        a.e(f"v_xor_b32 v{t7}, {db}, v{r}")
        a.e(f"v_lshl_add_u32 v{vWa+db}, v{t7}, 6, v{t6}")
    a.L = earlyL
    a.e(f"s_lshl_b32 s54, s{sW}, 3")
    a.e(f"v_add_u32 v{t5}, s54, v{g}")
    a.e(f"v_and_b32 v{t6}, 15, v{vLane}")
    a.e(f"v_and_b32 v{t7}, 15, v{t5}")
    a.e(f"v_xor_b32 v{t7}, v{t7}, v{t6}")
    a.e(f"v_lshlrev_b32 v{t7}, 4, v{t7}")
    a.e(f"v_lshl_add_u32 v{vDK0}, v{t5}, 8, v{t7}")
    a.e(f"v_add_u32 v{t7}, 4, v{t5}")
    a.e(f"v_and_b32 v{t7}, 15, v{t7}")
    a.e(f"v_xor_b32 v{t7}, v{t7}, v{t6}")
    a.e(f"v_lshlrev_b32 v{t7}, 4, v{t7}")
    a.e(f"v_lshl_add_u32 v{vDK1}, v{t5}, 8, v{t7}")
    a.e(f"v_and_b32 v{t7}, 3, v{t5}")
    a.e(f"v_lshlrev_b32 v{t7}, 2, v{t7}")
    a.e(f"v_xor_b32 v{t7}, v{t7}, v{t6}")
    a.e(f"v_lshlrev_b32 v{t7}, 4, v{t7}")
    a.e(f"v_lshl_add_u32 v{vDV}, v{t5}, 8, v{t7}")
    a.e(f"v_lshl_add_u32 v{vDW0}, v{t5}, 13, v{t7}")
    a.e(f"v_add_u32 v{vDW1}, 31744, v{vDW0}")
    a.L = lateL
    a.e(f"s_lshl_b32 s54, s{sW}, 5")
    a.e(f"v_add_u32 v{t5}, s54, v{q}")
    a.e(f"v_lshlrev_b32 v{t5}, 10, v{t5}")
    a.e(f"v_lshl_add_u32 v{vX}, v{hh}, 4, v{t5}")
    a.e(f"s_lshl_b32 s54, s{sW}, 18")
    a.e(f"v_lshlrev_b32 v{t5}, 4, v{vLane}")
    a.e(f"v_add_u32 v{vOo}, s54, v{t5}")
    a.L = earlyL
    a.e(f"s_lshl_b32 s54, s{sW}, 11")
    a.e(f"s_add_u32 s{sM0K}, s54, {KRING}")
    a.e(f"s_add_u32 s{sM0V}, s54, {VRING}")
    a.e(f"s_add_u32 s{sM0W}, s54, {WBASE}")
    a.e(f"s_mov_b32 s{sTile}, 0"); a.e(f"s_mov_b32 s{sTileV}, 0"); a.e(f"s_mov_b32 s{sWqOff}, 0")
    WSLOT = [VRING + 3 * 16384, WBUF, WBUF + 16384]
    XBUF = [KRING + 2 * 16384, VRING + 1 * 16384]
    vXd = 48
    vXa = 52
    vXf = vO
    sXoff = 43
    a.e(f"v_and_b32 v{t6}, 15, v{vLane}")
    a.e(f"v_xor_b32 v{t6}, v{t6}, v{g}")
    a.e(f"s_lshl_b32 s54, s{sW}, 15")
    for i in range(4):
        a.e(f"v_xor_b32 v{t7}, {4*i}, v{t6}")
        a.e(f"v_lshrrev_b32 v{t5}, 3, v{t7}")
        a.e(f"v_lshl_add_u32 v{t5}, v{g}, 1, v{t5}")
        a.e(f"v_lshlrev_b32 v{t5}, 10, v{t5}")
        a.e(f"v_and_b32 v{t7}, 7, v{t7}")
        a.e(f"v_lshl_add_u32 v{t5}, v{t7}, 4, v{t5}")
        a.e(f"v_add_u32 v{t5}, {8192*i - 1024*i}, v{t5}")
        a.e(f"v_add_u32 v{vXd+i}, s54, v{t5}")
    a.L = lateL
    a.e(f"v_lshrrev_b32 v{t5}, 1, v{q}")
    a.e(f"v_and_b32 v{t6}, 1, v{q}")
    a.e(f"v_lshl_add_u32 v{t6}, v{t6}, 3, v{hh}")
    a.e(f"v_xor_b32 v{t6}, v{t6}, v{t5}")
    a.e(f"s_lshl_b32 s54, s{sW}, 12")
    a.e(f"v_lshlrev_b32 v{t5}, 8, v{t5}")
    a.e(f"v_add_u32 v{t5}, s54, v{t5}")
    a.e(f"v_add_u32 v{t5}, 32768, v{t5}")
    for s_ in range(4):
        a.e(f"v_xor_b32 v{t7}, {2*s_}, v{t6}")
        a.e(f"v_lshl_add_u32 v{vXa+s_}, v{t7}, 4, v{t5}")
    a.L = earlyL
    a.e(f"s_lshl_b32 s54, s{sW}, 12")
    ROT = os.environ.get("ROT")
    if ROT:
        a.e(f"s_and_b32 s55, s{sB if ROT=='b' else sH}, 7")
        a.e(f"s_lshl_b32 s{sXoff}, s55, 7")
        a.e(f"s_lshl_b32 s{sWqOff}, s55, 19")
    else:
        a.e(f"s_mov_b32 s{sXoff}, 0")
    a.e(f"s_mov_b32 s63, s54")
    a.L.extend(srdL)
    def xload(c):
        a.e(f"s_add_u32 m0, s63, {XBUF[c%2]}")
        a.e("s_nop 0")
        for i in range(4):
            sq = a.vm(f"buffer_load_dwordx4 v{vXd+i}, s[{SX}:{SX+3}], s{sXoff} offen offset:{i*1024} lds")
        a.e(f"s_add_u32 s{sXoff}, s{sXoff}, 128")
        a.e(f"s_and_b32 s{sXoff}, s{sXoff}, 1023")
        return sq
    def wload(c):
        sq = dma_tile(a, SWQ, vDW0, vDW1, sWqOff, sM0W, WSLOT[c % 3] - WBASE, nt=False)
        a.e(f"s_add_u32 s{sWqOff}, s{sWqOff}, 524288")
        a.e(f"s_and_b32 s{sWqOff}, s{sWqOff}, 0x3fffff")
        return sq
    def kpart(slot):
        sq = dma_tile(a, SK, vDK0, vDK1, sTile, sM0K, slot * 16384); a.e(f"s_add_u32 s{sTile}, s{sTile}, 16384"); return sq
    def vpart(slot):
        sq = dma_tile(a, SV, vDV, vDV, sTileV, sM0V, slot * 16384); a.e(f"s_add_u32 s{sTileV}, s{sTileV}, 16384"); return sq
    kvparts2 = {1: (True, 0), 3: (True, 1), 5: (False, 0), 7: (True, 2)}
    kvparts = {1: lambda: kpart(0), 3: lambda: kpart(1), 5: lambda: vpart(0), 7: lambda: kpart(2)}
    xs = {}
    for c in range(2):
        wload(c); xs[c] = xload(c)
        if c == 0: a.e("s_barrier")
        if c == int(os.environ.get("QPF", "1")):
            a.e("s_lshl_b32 s54, s2, 14"); a.e(f"s_lshl_b32 s55, s{sW}, 11"); a.e("s_add_u32 s54, s54, s55")
            a.e("s_add_u32 s8, s50, s54"); a.e("s_addc_u32 s9, s51, 0"); a.e("s_mov_b32 s10, 2048"); a.e("s_mov_b32 s11, 0x00020000")
            a.e(f"v_lshlrev_b32 v{vP+12}, 4, v{vLane}")
            a.vm(f"buffer_load_dwordx4 {vr(vP,4)}, v{vP+12}, s[8:11], 0 offen")
            a.vm(f"buffer_load_dwordx4 {vr(vP+4,4)}, v{vP+12}, s[8:11], 0 offen offset:1024")
            a.e("s_lshl_b32 s54, s2, 13"); a.e(f"s_lshl_b32 s55, s{sW}, 10"); a.e("s_add_u32 s54, s54, s55")
            a.e("s_add_u32 s8, s44, s54"); a.e("s_addc_u32 s9, s45, 0"); a.e("s_mov_b32 s10, 1024")
            a.vm(f"buffer_load_dwordx4 {vr(vP+8,4)}, v{vP+12}, s[8:11], 0 offen")
    a.L.extend(lateL)
    pool = FragPool()
    QA = vS[0]
    kvseq = {}
    for c in range(8):
        a.c(f"-- qproj chunk {c}")
        a.wait_vm(xs[c])
        if os.environ.get("QST"): stamp(a)
        a.e("s_barrier")
        if os.environ.get("QST") and c < 2: stamp(a)
        for s_ in range(4):
            xq = a.ds(f"ds_read_b128 {vr(vXf+4*s_,4)}, v{vXa+s_} offset:{XBUF[c%2]-KRING-32768}")
        items = [(s, db) for s in range(4) for db in range(4)]
        st = {}
        def rd(j):
            s, db = items[j]
            rr = pool.get()
            base = (WSLOT[c % 3] - WBASE) + s * 4096
            a.ds(f"ds_read_b64_tr_b16 {vr(rr,2)}, v{vWa+db} offset:{base}")
            seq = a.ds(f"ds_read_b64_tr_b16 {vr(rr+2,2)}, v{vWa+db} offset:{base+1024}")
            st[j] = (rr, seq)
        PF = NF - 1
        for x in range(PF): rd(x)
        a.wait_ds(xq)
        steps = []
        if c + 2 < 8:
            def w_(half):
                if half == 0: a.e(f"s_add_u32 m0, s{sM0W}, {WSLOT[(c+2)%3]-WBASE}"); a.e("s_nop 0")
                a.vm(f"buffer_load_dwordx4 v{vDW0 if half==0 else vDW1}, s[{SWQ}:{SWQ+3}], s{sWqOff} offen offset:{1024*half} lds")
                if half == 1:
                    a.e(f"s_add_u32 s{sWqOff}, s{sWqOff}, 524288"); a.e(f"s_and_b32 s{sWqOff}, s{sWqOff}, 0x3fffff")
            def x_(i):
                if i == 0: a.e(f"s_add_u32 m0, s63, {XBUF[c%2]}"); a.e("s_nop 0")
                sq = a.vm(f"buffer_load_dwordx4 v{vXd+i}, s[{SX}:{SX+3}], s{sXoff} offen offset:{i*1024} lds")
                if i == 3:
                    a.e(f"s_add_u32 s{sXoff}, s{sXoff}, 128"); a.e(f"s_and_b32 s{sXoff}, s{sXoff}, 1023"); xs[c + 2] = sq
            steps += [lambda: w_(0), lambda: w_(1), lambda: x_(0), lambda: x_(1), lambda: x_(2), lambda: x_(3)]
        if c in kvparts:
            isk, slot = kvparts2[c]
            def kv_(half):
                srd, vo, so, m0r = (SK, (vDK0, vDK1), sTile, sM0K) if isk else (SV, (vDV, vDV), sTileV, sM0V)
                if half == 0: a.e(f"s_add_u32 m0, s{m0r}, {slot*16384}"); a.e("s_nop 0")
                sq = a.vm(f"buffer_load_dwordx4 v{vo[half]}, s[{srd}:{srd+3}], s{so} offen offset:{1024*half} nt lds")
                if half == 1:
                    a.e(f"s_add_u32 s{so}, s{so}, 16384"); kvseq[c] = sq
            steps += [lambda: kv_(0), lambda: kv_(1)]
        for j, (s, db) in enumerate(items):
            rr, seq = st[j]
            a.wait_ds(seq)
            acc = QA + db * 16
            cin = "0" if (c == 0 and s == 0) else vr(acc, 16)
            a.e(f"v_mfma_f32_32x32x16_bf16 {vr(acc,16)}, {vr(rr,4)}, {vr(vXf+4*s,4)}, {cin}")
            if j + PF < len(items): rd(j + PF)
            if j % 2 == 0 and j // 2 < len(steps): steps[j // 2]()
    stamp(a)
    a.e("s_nop 7"); a.e("s_nop 7")
    for db in range(4):
        for j in range(8):
            a.e(f"v_cvt_pk_bf16_f32 v{vQ+db*8+j}, v{QA+db*16+2*j}, v{QA+db*16+2*j+1}")
    a.e(f"v_mov_b32 v{vM}, 0xff800000")
    a.e(f"s_mov_b32 s{sThr}, {f32hex(8.0/SCALE)}"); a.e(f"s_mov_b32 s{sFlag}, 0")
    a.e(f"v_mov_b32 v{vLs}, 0")
    attn_main(a, pool, {0: kvseq[1], 1: kvseq[3], 2: kvseq[7]}, {0: kvseq[5]})
    stamp(a)
    a.e(f"v_mov_b32 v{vT1}, v{vLs}")
    a.e("s_nop 1")
    a.e(f"v_permlane32_swap_b32 v{vLs}, v{vT1}")
    a.e(f"v_add_f32 v{vLs}, v{vLs}, v{vT1}")
    a.e(f"v_rcp_f32 v{vAl}, v{vLs}")
    a.e("s_nop 7"); a.e("s_nop 7")
    a.e("s_mov_b32 s54, 4096")
    for db in range(4):
        for u in range(2):
            base = vO + db * 16 + 8 * u
            for j in range(8):
                a.e(f"v_mul_f32 v{base+j}, v{base+j}, v{vAl}")
            dst = vP + (db * 2 + u) % 4 * 4
            for j in range(4):
                a.e(f"v_cvt_pk_bf16_f32 v{dst+j}, v{base+2*j}, v{base+2*j+1}")
            idx = db * 2 + u
            so = "0" if idx < 4 else "s54"
            a.e(f"buffer_store_dwordx4 {vr(dst,4)}, v{vOo}, s[{SO}:{SO+3}], {so} offen offset:{(idx%4)*1024}{os.environ.get('OST','')}")
    a.e("s_waitcnt vmcnt(0)")
    stamp(a); stamp(a)
    stamp_store(a)
    a.lab("L_attn_done")
    a.e("s_endpgm")
    for x in RARE: a.e(x)

def gen_gemm(a):
    a.lab("oproj_kernel")
    vL = 1; vBo0 = 2; vBo1 = 3; vD = 4; vA0 = 5; vA1 = 6; vt0 = 7; vt1 = 8; vt2 = 9; vRed = 10; vOut = 11
    vB = 16
    vAcc = 112
    vFr = 176
    NFR = 8
    SOf = 12; SWo = 16; SOut = 20
    sWv = 34; sCh = 36; sWoOff = 37; sTmp = 38
    a.e("s_cmp_ge_u32 s2, 256")
    a.e("s_cbranch_scc1 L_gemm_done")
    a.e("s_load_dwordx4 s[44:47], s[0:1], 32")
    a.e("s_load_dwordx2 s[52:53], s[0:1], 56")
    if os.environ.get("MAPB"):
        a.e("s_and_b32 s3, s2, 7"); a.e("s_lshl_b32 s3, s3, 2"); a.e("s_bfe_u32 s33, s2, 0x20003"); a.e("s_add_u32 s3, s3, s33")
        a.e("s_lshr_b32 s33, s2, 5")
    elif os.environ.get("MAP2"):
        a.e("s_bfe_u32 s3, s2, 0x20001"); a.e("s_lshl_b32 s3, s3, 3"); a.e("s_lshr_b32 s33, s2, 5"); a.e("s_add_u32 s3, s3, s33")
        a.e("s_and_b32 s33, s2, 1"); a.e("s_lshl_b32 s33, s33, 2"); a.e("s_bfe_u32 s54, s2, 0x20003"); a.e("s_add_u32 s33, s33, s54")
    else:
        a.e("s_lshr_b32 s3, s2, 6"); a.e("s_lshl_b32 s3, s3, 3"); a.e("s_and_b32 s33, s2, 7"); a.e("s_add_u32 s3, s3, s33")
        a.e("s_bfe_u32 s33, s2, 0x30003")
    a.e(f"v_lshrrev_b32 v{vt0}, 6, v0")
    a.e(f"v_and_b32 v{vL}, 63, v0")
    a.e("s_nop 0")
    a.e(f"v_readfirstlane_b32 s{sWv}, v{vt0}")
    a.e("s_waitcnt lgkmcnt(0)")
    a.e("s_lshl_b32 s54, s3, 19"); a.e(f"s_lshl_b32 s55, s{sWv}, 16"); a.e("s_add_u32 s54, s54, s55")
    a.e(f"s_add_u32 s{SOf}, s52, s54"); a.e(f"s_addc_u32 s{SOf+1}, s53, 0")
    a.e(f"s_sub_u32 s{SOf+2}, 16777216, s54"); a.e(f"s_mov_b32 s{SOf+3}, 0x00020000")
    a.e(f"s_lshl_b32 s54, s{sWv}, 20"); a.e("s_lshl_b32 s55, s33, 7"); a.e("s_add_u32 s54, s54, s55")
    a.e(f"s_add_u32 s{SWo}, s44, s54"); a.e(f"s_addc_u32 s{SWo+1}, s45, 0")
    a.e(f"s_sub_u32 s{SWo+2}, 4194304, s54"); a.e(f"s_mov_b32 s{SWo+3}, 0x00020000")
    a.e("s_lshl_b32 s54, s3, 16"); a.e("s_add_u32 s54, s54, s55")
    a.e(f"s_add_u32 s{SOut}, s46, s54"); a.e(f"s_addc_u32 s{SOut+1}, s47, 0")
    a.e(f"s_sub_u32 s{SOut+2}, 2097152, s54"); a.e(f"s_mov_b32 s{SOut+3}, 0x00020000")
    a.e(f"v_lshlrev_b32 v{vBo0}, 4, v{vL}")
    a.e(f"v_add_u32 v{vBo1}, 262144, v{vBo0}")
    a.e(f"v_lshrrev_b32 v{vt0}, 3, v{vL}")
    a.e(f"v_and_b32 v{vt1}, 7, v{vL}")
    a.e(f"v_bfe_u32 v{vt2}, v{vL}, 4, 1")
    a.e(f"v_lshlrev_b32 v{vt2}, 2, v{vt2}")
    a.e(f"v_xor_b32 v{vt1}, v{vt1}, v{vt2}")
    a.e(f"v_lshlrev_b32 v{vt1}, 4, v{vt1}")
    a.e(f"v_lshl_add_u32 v{vD}, v{vt0}, 10, v{vt1}")
    a.e(f"v_lshrrev_b32 v{vt0}, 5, v{vL}")
    a.e(f"v_bfe_u32 v{vt1}, v{vL}, 2, 2")
    a.e(f"v_lshl_add_u32 v{vt0}, v{vt0}, 2, v{vt1}")
    a.e(f"v_lshlrev_b32 v{vt0}, 7, v{vt0}")
    a.e(f"v_bfe_u32 v{vt2}, v{vL}, 4, 1")
    a.e(f"v_lshl_add_u32 v{vt0}, v{vt2}, 5, v{vt0}")
    a.e(f"v_and_b32 v{vt2}, 3, v{vL}")
    a.e(f"v_lshl_add_u32 v{vt0}, v{vt2}, 3, v{vt0}")
    a.e(f"s_mul_i32 s54, s{sWv}, 24576")
    a.e(f"v_add_u32 v{vt0}, s54, v{vt0}")
    a.e(f"v_lshrrev_b32 v{vt1}, 1, v{vt1}")
    a.e(f"v_lshl_add_u32 v{vA0}, v{vt1}, 6, v{vt0}")
    a.e(f"v_xor_b32 v{vt1}, 1, v{vt1}")
    a.e(f"v_lshl_add_u32 v{vA1}, v{vt1}, 6, v{vt0}")
    a.e(f"s_mov_b32 s{sCh}, 0"); a.e(f"s_mov_b32 s{sWoOff}, 0")
    a.e(f"s_mov_b32 s39, s54")
    def load_chunk(buf):
        for mb in range(2):
            for s in range(4):
                if os.environ.get("NOB"): continue
                a.e(f"buffer_load_dwordx4 {vr(vB+buf*32+mb*16+s*4,4)}, v{vBo0 if mb==0 else vBo1}, s[{SOf}:{SOf+3}], s{sCh} offen offset:{s*1024}{os.environ.get('OLD','')}")
        a.e(f"s_add_u32 s{sCh}, s{sCh}, 4096")
        for i in range(8):
            a.e(f"s_add_u32 m0, s39, {buf*8192+i*1024}")
            a.e(f"s_add_u32 s{sTmp}, s{sWoOff}, {i*8192}")
            if not os.environ.get("NOA"): a.e(f"buffer_load_dwordx4 v{vD}, s[{SWo}:{SWo+3}], s{sTmp} offen{os.environ.get('WLD','')} lds")
        a.e(f"s_add_u32 s{sWoOff}, s{sWoOff}, 65536")
    load_chunk(0); load_chunk(1)
    pi = [0]
    def getf():
        r = vFr + 4 * (pi[0] % NFR); pi[0] += 1; return r
    for ch in range(16):
        buf = ch % 3
        a.c(f"-- chunk {ch}")
        if ch + 2 < 16:
            load_chunk((ch + 2) % 3)
            a.e("s_waitcnt vmcnt(32)")
        elif ch + 1 < 16:
            a.e("s_waitcnt vmcnt(16)")
        else:
            a.e("s_waitcnt vmcnt(0)")
        items = [(s, nb) for s in range(4) for nb in range(2)]
        st = {}
        def rd(j):
            s, nb = items[j]
            rr = getf()
            base = buf * 8192 + 16 * s * 128
            a.ds(f"ds_read_b64_tr_b16 {vr(rr,2)}, v{vA0 if nb==0 else vA1} offset:{base}")
            seq = a.ds(f"ds_read_b64_tr_b16 {vr(rr+2,2)}, v{vA0 if nb==0 else vA1} offset:{base+1024}")
            st[j] = (rr, seq)
        PF = 4
        for x in range(PF): rd(x)
        for j, (s, nb) in enumerate(items):
            rr, seq = st[j]
            a.wait_ds(seq)
            for mb in range(2):
                acc = vAcc + (nb * 2 + mb) * 16
                cin = "0" if (ch == 0 and s == 0) else vr(acc, 16)
                a.e(f"v_mfma_f32_32x32x16_bf16 {vr(acc,16)}, {vr(rr,4)}, {vr(vB+buf*32+mb*16+s*4,4)}, {cin}")
            if j + PF < len(items): rd(j + PF)
    a.e("s_nop 7"); a.e("s_nop 7")
    a.e("s_barrier")
    a.e(f"s_lshl_b32 s54, s{sWv}, 14")
    a.e(f"v_lshlrev_b32 v{vt0}, 4, v{vL}")
    a.e(f"v_add_u32 v{vRed}, s54, v{vt0}")
    for qd in range(16):
        a.e(f"ds_write_b128 v{vRed}, {vr(vAcc+qd*4,4)} offset:{qd*1024}")
    a.e("s_waitcnt lgkmcnt(0)")
    a.e("s_barrier")
    a.e(f"s_lshl_b32 s54, s{sWv}, 12")
    a.e(f"v_add_u32 v{vRed}, s54, v{vt0}")
    for src in range(4):
        for qd in range(4):
            a.e(f"ds_read_b128 {vr(vB+src*16+qd*4,4)}, v{vRed} offset:{src*16384+qd*1024}")
    a.e("s_waitcnt lgkmcnt(0)")
    for i in range(16):
        a.e(f"v_add_f32 v{vB+i}, v{vB+i}, v{vB+16+i}")
        a.e(f"v_add_f32 v{vB+32+i}, v{vB+32+i}, v{vB+48+i}")
    for i in range(16):
        a.e(f"v_add_f32 v{vB+i}, v{vB+i}, v{vB+32+i}")
    a.e(f"s_and_b32 s54, s{sWv}, 1"); a.e("s_lshl_b32 s54, s54, 15")
    a.e(f"s_lshr_b32 s55, s{sWv}, 1"); a.e("s_lshl_b32 s55, s55, 6"); a.e("s_add_u32 s54, s54, s55")
    a.e(f"v_and_b32 v{vt1}, 31, v{vL}")
    a.e(f"v_lshlrev_b32 v{vt1}, 10, v{vt1}")
    a.e(f"v_lshrrev_b32 v{vt2}, 5, v{vL}")
    a.e(f"v_lshl_add_u32 v{vt1}, v{vt2}, 3, v{vt1}")
    a.e(f"v_add_u32 v{vOut}, s54, v{vt1}")
    for q4 in range(4):
        a.e(f"v_cvt_pk_bf16_f32 v{vB+64+2*q4}, v{vB+4*q4}, v{vB+4*q4+1}")
        a.e(f"v_cvt_pk_bf16_f32 v{vB+64+2*q4+1}, v{vB+4*q4+2}, v{vB+4*q4+3}")
        a.e(f"buffer_store_dwordx2 {vr(vB+64+2*q4,2)}, v{vOut}, s[{SOut}:{SOut+3}], 0 offen offset:{q4*16}")
    a.lab("L_gemm_done")
    a.e("s_endpgm")

def gen_gemm2(a):
    a.lab("oproj_kernel")
    vL = 1; vBo0 = 2; vBo1 = 3; vD = 4; vA0 = 5; vA1 = 6; vt0 = 7; vt1 = 8; vt2 = 9; vRed = 10; vOut = 11
    NB = 5; PFD = 4
    vB = 16
    vAcc = 96
    vFr = 160
    NFR = 8
    SOf = 12; SWo = 16; SOut = 20
    sWv = 34; sCh = 36; sWoOff = 37; sTmp = 38
    a.e("s_cmp_ge_u32 s2, 256")
    a.e("s_cbranch_scc1 L_gemm_done")
    a.e("s_load_dwordx4 s[44:47], s[0:1], 32")
    a.e("s_load_dwordx2 s[52:53], s[0:1], 56")
    a.e("s_lshr_b32 s3, s2, 6"); a.e("s_lshl_b32 s3, s3, 3"); a.e("s_and_b32 s33, s2, 7"); a.e("s_add_u32 s3, s3, s33")
    a.e("s_bfe_u32 s33, s2, 0x30003")
    if os.environ.get("FIXT") in ("m", "mn"): a.e("s_mov_b32 s3, 0")
    if os.environ.get("FIXT") in ("n", "mn"): a.e("s_mov_b32 s33, 0")
    a.e(f"v_lshrrev_b32 v{vt0}, 6, v0")
    a.e(f"v_and_b32 v{vL}, 63, v0")
    a.e("s_nop 0")
    a.e(f"v_readfirstlane_b32 s{sWv}, v{vt0}")
    a.e(f"v_lshlrev_b32 v{vBo0}, 4, v{vL}")
    a.e(f"v_add_u32 v{vBo1}, 262144, v{vBo0}")
    a.e(f"v_lshrrev_b32 v{vt0}, 3, v{vL}")
    a.e(f"v_and_b32 v{vt1}, 7, v{vL}")
    a.e(f"v_bfe_u32 v{vt2}, v{vL}, 4, 1")
    a.e(f"v_lshlrev_b32 v{vt2}, 2, v{vt2}")
    a.e(f"v_xor_b32 v{vt1}, v{vt1}, v{vt2}")
    a.e(f"v_lshlrev_b32 v{vt1}, 4, v{vt1}")
    a.e(f"v_lshl_add_u32 v{vD}, v{vt0}, 10, v{vt1}")
    a.e("s_waitcnt lgkmcnt(0)")
    a.e("s_lshl_b32 s54, s3, 19"); a.e(f"s_lshl_b32 s55, s{sWv}, 15"); a.e("s_add_u32 s54, s54, s55")
    a.e(f"s_add_u32 s{SOf}, s52, s54"); a.e(f"s_addc_u32 s{SOf+1}, s53, 0")
    a.e(f"s_sub_u32 s{SOf+2}, 16777216, s54"); a.e(f"s_mov_b32 s{SOf+3}, 0x00020000")
    a.e(f"s_lshl_b32 s54, s{sWv}, 19"); a.e("s_lshl_b32 s55, s33, 7"); a.e("s_add_u32 s54, s54, s55")
    a.e(f"s_add_u32 s{SWo}, s44, s54"); a.e(f"s_addc_u32 s{SWo+1}, s45, 0")
    a.e(f"s_sub_u32 s{SWo+2}, 4194304, s54"); a.e(f"s_mov_b32 s{SWo+3}, 0x00020000")
    a.e(f"s_mov_b32 s{sCh}, 0"); a.e(f"s_mov_b32 s{sWoOff}, 0")
    a.e(f"s_mul_i32 s39, s{sWv}, {NB*4096}")
    def load_chunk(buf):
        for i in range(4):
            a.e(f"s_add_u32 m0, s39, {buf*4096+i*1024}")
            a.e(f"s_add_u32 s{sTmp}, s{sWoOff}, {i*8192}")
            a.e(f"buffer_load_dwordx4 v{vD}, s[{SWo}:{SWo+3}], s{sTmp} offen lds")
        a.e(f"s_add_u32 s{sWoOff}, s{sWoOff}, 32768")
        for mb in range(2):
            for s_ in range(2):
                a.e(f"buffer_load_dwordx4 {vr(vB+buf*16+mb*8+s_*4,4)}, v{vBo0 if mb==0 else vBo1}, s[{SOf}:{SOf+3}], s{sCh} offen offset:{s_*1024}")
        a.e(f"s_add_u32 s{sCh}, s{sCh}, 2048")
    for c in range(PFD): load_chunk(c)
    a.e("s_lshl_b32 s54, s3, 16"); a.e("s_lshl_b32 s55, s33, 7"); a.e("s_add_u32 s54, s54, s55")
    a.e(f"s_add_u32 s{SOut}, s46, s54"); a.e(f"s_addc_u32 s{SOut+1}, s47, 0")
    a.e(f"s_sub_u32 s{SOut+2}, 2097152, s54"); a.e(f"s_mov_b32 s{SOut+3}, 0x00020000")
    a.e(f"v_lshrrev_b32 v{vt0}, 5, v{vL}")
    a.e(f"v_bfe_u32 v{vt1}, v{vL}, 2, 2")
    a.e(f"v_lshl_add_u32 v{vt0}, v{vt0}, 2, v{vt1}")
    a.e(f"v_lshlrev_b32 v{vt0}, 7, v{vt0}")
    a.e(f"v_bfe_u32 v{vt2}, v{vL}, 4, 1")
    a.e(f"v_lshl_add_u32 v{vt0}, v{vt2}, 5, v{vt0}")
    a.e(f"v_and_b32 v{vt2}, 3, v{vL}")
    a.e(f"v_lshl_add_u32 v{vt0}, v{vt2}, 3, v{vt0}")
    a.e(f"v_add_u32 v{vt0}, s39, v{vt0}")
    a.e(f"v_lshrrev_b32 v{vt1}, 1, v{vt1}")
    a.e(f"v_lshl_add_u32 v{vA0}, v{vt1}, 6, v{vt0}")
    a.e(f"v_xor_b32 v{vt1}, 1, v{vt1}")
    a.e(f"v_lshl_add_u32 v{vA1}, v{vt1}, 6, v{vt0}")
    pi = [0]
    def getf():
        r = vFr + 4 * (pi[0] % NFR); pi[0] += 1; return r
    NCH = 16
    for ch in range(NCH):
        buf = ch % NB
        a.c(f"-- chunk {ch}")
        if ch + PFD < NCH: load_chunk((ch + PFD) % NB)
        rem = min(PFD, NCH - 1 - ch)
        a.e(f"s_waitcnt vmcnt({8*rem})")
        items = [(s_, nb) for s_ in range(2) for nb in range(2)]
        st = {}
        for j, (s_, nb) in enumerate(items):
            rr = getf()
            base = buf * 4096 + s_ * 2048
            a.ds(f"ds_read_b64_tr_b16 {vr(rr,2)}, v{vA0 if nb==0 else vA1} offset:{base}")
            seq = a.ds(f"ds_read_b64_tr_b16 {vr(rr+2,2)}, v{vA0 if nb==0 else vA1} offset:{base+1024}")
            st[j] = (rr, seq)
        for j, (s_, nb) in enumerate(items):
            rr, seq = st[j]
            a.wait_ds(seq)
            for mb in range(2):
                acc = vAcc + (nb * 2 + mb) * 16
                cin = "0" if (ch == 0 and s_ == 0) else vr(acc, 16)
                a.e(f"v_mfma_f32_32x32x16_bf16 {vr(acc,16)}, {vr(rr,4)}, {vr(vB+buf*16+mb*8+s_*4,4)}, {cin}")
    a.e("s_nop 7"); a.e("s_nop 7")
    a.e("s_barrier")
    a.e(f"s_lshl_b32 s54, s{sWv}, 14")
    a.e(f"v_lshlrev_b32 v{vt0}, 4, v{vL}")
    a.e(f"v_add_u32 v{vRed}, s54, v{vt0}")
    for qd in range(16):
        a.e(f"ds_write_b128 v{vRed}, {vr(vAcc+qd*4,4)} offset:{qd*1024}")
    a.e("s_waitcnt lgkmcnt(0)")
    a.e("s_barrier")
    a.e(f"s_lshl_b32 s54, s{sWv}, 11")
    a.e(f"v_add_u32 v{vRed}, s54, v{vt0}")
    a.e(f"v_add_u32 v{vt1}, 0x10000, v{vRed}")
    for src in range(8):
        for qd in range(2):
            a.e(f"ds_read_b128 {vr(vB+src*8+qd*4,4)}, v{vRed if src < 4 else vt1} offset:{(src%4)*16384+qd*1024}")
    a.e("s_waitcnt lgkmcnt(0)")
    for i in range(8):
        for p_ in range(4):
            a.e(f"v_add_f32 v{vB+16*p_+i}, v{vB+16*p_+i}, v{vB+16*p_+8+i}")
    for i in range(8):
        a.e(f"v_add_f32 v{vB+i}, v{vB+i}, v{vB+16+i}")
        a.e(f"v_add_f32 v{vB+32+i}, v{vB+32+i}, v{vB+48+i}")
    for i in range(8):
        a.e(f"v_add_f32 v{vB+i}, v{vB+i}, v{vB+32+i}")
    a.e(f"s_bfe_u32 s54, s{sWv}, 0x10001"); a.e("s_lshl_b32 s54, s54, 15")
    a.e(f"s_lshr_b32 s55, s{sWv}, 2"); a.e("s_lshl_b32 s55, s55, 6"); a.e("s_add_u32 s54, s54, s55")
    a.e(f"s_and_b32 s55, s{sWv}, 1"); a.e("s_lshl_b32 s55, s55, 5"); a.e("s_add_u32 s54, s54, s55")
    a.e(f"v_and_b32 v{vt1}, 31, v{vL}")
    a.e(f"v_lshlrev_b32 v{vt1}, 10, v{vt1}")
    a.e(f"v_lshrrev_b32 v{vt2}, 5, v{vL}")
    a.e(f"v_lshl_add_u32 v{vt1}, v{vt2}, 3, v{vt1}")
    a.e(f"v_add_u32 v{vOut}, s54, v{vt1}")
    for q4 in range(2):
        a.e(f"v_cvt_pk_bf16_f32 v{vB+64+2*q4}, v{vB+4*q4}, v{vB+4*q4+1}")
        a.e(f"v_cvt_pk_bf16_f32 v{vB+64+2*q4+1}, v{vB+4*q4+2}, v{vB+4*q4+3}")
        a.e(f"buffer_store_dwordx2 {vr(vB+64+2*q4,2)}, v{vOut}, s[{SOut}:{SOut+3}], 0 offen offset:{q4*16}")
    a.lab("L_gemm_done")
    a.e("s_endpgm")

HDR = """; Kernarg layout for this problem (64 bytes, ptrs only, base s[0:1]):
;   offset   0: d_in[0] x  shape=(8, 256, 512) dtype=bfloat16
;   offset   8: d_in[1] k_cache  shape=(8, 32, 1024, 128) dtype=bfloat16
;   offset  16: d_in[2] v_cache  shape=(8, 32, 1024, 128) dtype=bfloat16
;   offset  24: d_in[3] wq  shape=(512, 4096) dtype=bfloat16
;   offset  32: d_in[4] wo  shape=(4096, 512) dtype=bfloat16
;   offset  40: d_out     shape=(8, 256, 512) dtype=bfloat16
;   offset  48: d_debug   256 bytes
; @launch kernel=attn_kernel grid=(256,1,1) block=(512,1,1) lds=163840
; @launch kernel=oproj_kernel grid=(256,1,1) block=(BLK2,1,1) lds=LDS2
.amdgcn_target "amdgcn-amd-amdhsa--gfx950"
.text
"""
def kd(name, nv, ns=100):
    return f""".amdhsa_kernel {name}
  .amdhsa_next_free_vgpr {nv}
  .amdhsa_next_free_sgpr {ns}
  .amdhsa_accum_offset {nv}
  .amdhsa_group_segment_fixed_size 0
  .amdhsa_kernarg_size 64
  .amdhsa_user_sgpr_count 2
  .amdhsa_user_sgpr_kernarg_segment_ptr 1
  .amdhsa_system_sgpr_workgroup_id_x 1
  .amdhsa_float_denorm_mode_32 3
.end_amdhsa_kernel
"""
def main():
    G2 = not os.environ.get("OLDG")
    out = HDR.replace("BLK2", "512" if G2 else "256").replace("LDS2", "163840" if G2 else "98304")
    a = A(); gen_attn(a)
    out += ".globl attn_kernel\n.p2align 8\n.type attn_kernel,@function\n" + "\n".join(a.L) + "\n"
    b = A(); (gen_gemm2 if G2 else gen_gemm)(b)
    out += ".globl oproj_kernel\n.p2align 8\n.type oproj_kernel,@function\n" + "\n".join(b.L) + "\n"
    out += '.section .rodata,"a"\n.p2align 6\n' + kd("attn_kernel", NVG1) + ".p2align 6\n" + kd("oproj_kernel", 192 if G2 else 208)
    open(sys.argv[1] if len(sys.argv) > 1 else "standalone__gqa_block_cached__near_ridge.s", "w").write(out)
main()
```

```python
import sys, math, os

class A:
    def __init__(s):
        s.L = []
        s.ds_seq = 0
        s.ds_done = 0
    def e(s, t): s.L.append("    " + t)
    def lab(s, t): s.L.append(t + ":")
    def c(s, t): s.L.append("    ; " + t)
    def ds(s, t):
        s.e(t); s.ds_seq += 1; return s.ds_seq
    def wait_ds(s, seq):
        if seq <= s.ds_done: return
        n = s.ds_seq - seq
        n = min(n, 15)
        s.e(f"s_waitcnt lgkmcnt({n})")
        s.ds_done = s.ds_seq - n
    def ds_reset(s):
        s.ds_seq = 0; s.ds_done = 0
    def vm(s, t):
        s.e(t); s.vm_seq = getattr(s, 'vm_seq', 0) + 1; return s.vm_seq
    def wait_vm(s, seq):
        n = s.vm_seq - seq
        assert n <= 63
        s.e(f"s_waitcnt vmcnt({n})")

def vr(a, n): return f"v[{a}:{a+n-1}]"

vLane = 1; vT0 = 2; vT1 = 3; vT2 = 4; vT3 = 5
vKa = 8
vVa = 16
vWa = 20
vDK0 = 24; vDK1 = 25; vDV = 26; vDW0 = 27; vDW1 = 28; vX = 29
vM = 30; vLs = 31
vQ = 32
vO = 64
vS = [128, 160]
vP = 192
vF = 208
NF = 6
vAl = 232; vMc = 233; vOo = 234; vVb = 235
vWoA = 239; vWoT = 240; vWoS = 248
NVG1 = 252
WS2 = 0x2000000
G3 = not os.environ.get('OLDG') and not os.environ.get('G2')
sB = 3; sH = 33; sW = 34
SX = 12; SK = 16; SV = 20; SWQ = 24; SO = 28
sC = 35
sTile = 36
sTileV = 37
sM0K = 38; sM0V = 39; sM0W = 40
sWqOff = 41
sLoop = 42
KRING = 0; VRING = 65536; WBUF = 131072; WBASE = VRING + 32768
SCALE = (128 ** -0.5) * math.log2(math.e)
import struct
def f32hex(x): return "0x%08x" % struct.unpack("<I", struct.pack("<f", x))[0]

def interleave(a, mfmas, valu, per=None):
    n = len(mfmas); tot = len(valu); done = 0
    for i, m in enumerate(mfmas):
        m()
        upto = (tot * (i + 1)) // n
        while done < upto:
            a.e(valu[done]); done += 1

class FragPool:
    def __init__(s): s.i = 0
    def get(s):
        r = vF + 4 * (s.i % NF); s.i += 1; return r

def dma_tile(a, srd, voff0, voff1, soff, m0sreg, slot_imm, nt=True):
    a.e(f"s_add_u32 m0, s{m0sreg}, {slot_imm}")
    a.e("s_nop 0")
    n = " nt" if nt else ""
    a.vm(f"buffer_load_dwordx4 v{voff0}, s[{srd}:{srd+3}], s{soff} offen{n} lds")
    return a.vm(f"buffer_load_dwordx4 v{voff1}, s[{srd}:{srd+3}], s{soff} offen offset:1024{n} lds")

def qk_ops(a, pool, slot, Sdst):
    items = [(kb, s) for kb in range(2) for s in range(8)]
    st = {}
    def rd(j):
        kb, s = items[j]
        r = pool.get()
        seq = a.ds(f"ds_read_b128 {vr(r,4)}, v{vKa+s} offset:{KRING+slot*16384+kb*8192}")
        st[j] = (r, seq)
    PF = NF - 1
    ops = []
    def mk(j):
        def f():
            if j == 0:
                for x in range(PF): rd(x)
            if j + PF < len(items) and j > 0: rd(j + PF - 1 + 0) if False else None
            kb, s = items[j]
            r, seq = st[j]
            a.wait_ds(seq)
            acc = Sdst + kb * 16
            cin = "0" if s == 0 else vr(acc, 16)
            a.e(f"v_mfma_f32_32x32x16_bf16 {vr(acc,16)}, {vr(r,4)}, {vr(vQ+4*s,4)}, {cin}")
            if j + PF < len(items): rd(j + PF)
        return f
    return [mk(j) for j in range(len(items))]

def pv_ops(a, pool, slot):
    items = [(db, kb, u) for db in range(4) for kb in range(2) for u in range(2)]
    st = {}
    def rd(j):
        db, kb, u = items[j]
        r = pool.get()
        base = slot * 16384 + (32 * kb + 16 * u) * 256
        a.ds(f"ds_read_b64_tr_b16 {vr(r,2)}, v{vVa+db} offset:{base}")
        seq = a.ds(f"ds_read_b64_tr_b16 {vr(r+2,2)}, v{vVa+db} offset:{base+2048}")
        st[j] = (r, seq)
    PF = NF - 1
    def mk(j):
        def f():
            if j == 0:
                for x in range(PF): rd(x)
            db, kb, u = items[j]
            r, seq = st[j]
            a.wait_ds(seq)
            acc = vO + db * 16
            a.e(f"v_mfma_f32_32x32x16_bf16 {vr(acc,16)}, {vr(r,4)}, {vr(vP+(kb*2+u)*4,4)}, {vr(acc,16)}")
            if j + PF < len(items): rd(j + PF)
        return f
    return [mk(j) for j in range(len(items))]

sThr = 62; sFlag = 61
RARE = []
def softmax_head(S, uid):
    v = []
    v.append(f"v_max3_f32 v{vT0}, v{S+0}, v{S+1}, v{S+2}")
    v.append(f"v_max3_f32 v{vT1}, v{S+3}, v{S+4}, v{S+5}")
    v.append(f"v_max3_f32 v{vT2}, v{S+6}, v{S+7}, v{S+8}")
    v.append(f"v_max3_f32 v{vT3}, v{S+9}, v{S+10}, v{S+11}")
    k = 12; t = 0
    T = [vT0, vT1, vT2, vT3]
    while k < 32:
        v.append(f"v_max3_f32 v{T[t]}, v{T[t]}, v{S+k}, v{S+k+1}")
        k += 2; t = (t + 1) % 4
    v.append(f"v_max3_f32 v{vT0}, v{vT0}, v{vT1}, v{vT2}")
    v.append(f"v_max_f32 v{vT0}, v{vT0}, v{vT3}")
    v.append(f"v_mov_b32 v{vT1}, v{vT0}")
    v.append("s_nop 1")
    v.append(f"v_permlane32_swap_b32 v{vT0}, v{vT1}")
    v.append(f"v_max_f32 v{vT0}, v{vT0}, v{vT1}")
    v.append(f"v_sub_f32 v{vT1}, v{vT0}, v{vM}")
    v.append(f"v_cmp_lt_f32 vcc, s{sThr}, v{vT1}")
    v.append(f"s_cbranch_vccnz L_rs1_{uid}")
    v.append(f"L_bk1_{uid}:")
    r = [f"L_rs1_{uid}:",
         f"v_max_f32 v{vT0}, v{vT0}, v{vM}",
         f"v_sub_f32 v{vT1}, v{vM}, v{vT0}",
         f"v_mul_f32 v{vT1}, s{sC}, v{vT1}",
         f"v_exp_f32 v{vAl}, v{vT1}",
         f"v_mov_b32 v{vM}, v{vT0}",
         f"v_mul_f32 v{vMc}, s{sC}, v{vT0}",
         f"s_mov_b32 s{sFlag}, 1",
         f"v_mul_f32 v{vLs}, v{vLs}, v{vAl}",
         f"s_branch L_bk1_{uid}"]
    RARE.extend(r)
    return [(x, 4, None) for x in v]

def softmax_body(S):
    v = []
    for i in range(32 + 2):
        if i < 32: v.append((f"v_fma_f32 v{S+i}, v{S+i}, s{sC}, -v{vMc}", 4, None))
        if 0 <= i - 1 < 32: v.append((f"v_exp_f32 v{S+i-1}, v{S+i-1}", 8, i - 1))
        if 0 <= i - 2 < 32: v.append((f"v_add_f32 v{vLs}, v{vLs}, v{S+i-2}", 4, None))
    return v

def rescale_check(a, uid):
    a.e(f"s_cmp_lg_u32 s{sFlag}, 0")
    a.e(f"s_cbranch_scc1 L_rs2_{uid}")
    a.lab(f"L_bk2_{uid}")
    r = [f"L_rs2_{uid}:", "s_nop 7", "s_nop 7"]
    for i in range(64): r.append(f"v_mul_f32 v{vO+i}, v{vO+i}, v{vAl}")
    r += [f"s_mov_b32 s{sFlag}, 0", "s_nop 1", f"s_branch L_bk2_{uid}"]
    RARE.extend(r)

UID = [0]
NVS = 5
class Op:
    def __init__(s, rd, mf): s.rd = rd; s.mf = mf; s.st = None
def mk_qk(a, pool, tile, Sdst):
    slot = tile % 4
    ops = []
    for kb in range(2):
        for s_ in range(8):
            def rd(kb=kb, s_=s_):
                r = pool.get()
                seq = a.ds(f"ds_read_b128 {vr(r,4)}, v{vKa+s_} offset:{KRING+slot*16384+kb*8192}")
                return (r, seq)
            def mf(st, kb=kb, s_=s_):
                r, seq = st
                a.wait_ds(seq)
                acc = Sdst + kb * 16
                cin = "0" if s_ == 0 else vr(acc, 16)
                a.e(f"v_mfma_f32_32x32x16_bf16 {vr(acc,16)}, {vr(r,4)}, {vr(vQ+4*s_,4)}, {cin}")
            ops.append(Op(rd, mf))
    return ops
def mk_pv(a, pool, tile):
    slot = tile % NVS
    ops = []
    for db in range(4):
        for kb in range(2):
            for u in range(2):
                def rd(db=db, kb=kb, u=u):
                    r = pool.get()
                    base = (slot % 4) * 16384 + (32 * kb + 16 * u) * 256
                    va = (vVa if slot < 4 else vVb) + db
                    a.ds(f"ds_read_b64_tr_b16 {vr(r,2)}, v{va} offset:{base}")
                    seq = a.ds(f"ds_read_b64_tr_b16 {vr(r+2,2)}, v{va} offset:{base+2048}")
                    return (r, seq)
                def mf(st, db=db, kb=kb, u=u):
                    r, seq = st
                    a.wait_ds(seq)
                    acc = vO + db * 16
                    cin = "0" if (tile == 0 and kb == 0 and u == 0) else vr(acc, 16)
                    a.e(f"v_mfma_f32_32x32x16_bf16 {vr(acc,16)}, {vr(r,4)}, {vr(vP+(kb*2+u)*4,4)}, {cin}")
                ops.append(Op(rd, mf))
    return ops

def attn_main(a, pool, kseq, vseq):
    PF = NF - 1
    allops = []
    plan = []
    plan.append((-1, 0, 0, 16)); allops += mk_qk(a, pool, 0, vS[0])
    for t in range(16):
        st = len(allops)
        pv = mk_pv(a, pool, t - 1) if t >= 1 else []
        qk = mk_qk(a, pool, t + 1, vS[(t + 1) % 2]) if t <= 14 else []
        allops += pv + qk
        plan.append((t, st, len(pv), len(qk)))
    plan.append((16, len(allops), 16, 0)); allops += mk_pv(a, pool, 15)
    rp = [0]
    def prefetch(upto, limit):
        while rp[0] <= upto and rp[0] < limit:
            allops[rp[0]].st = allops[rp[0]].rd(); rp[0] += 1
    def kdma(tile, half):
        if tile > 15: return
        if half == 0: a.e(f"s_add_u32 m0, s{sM0K}, {(tile%4)*16384}"); a.e("s_nop 0")
        a.vm(f"buffer_load_dwordx4 v{vDK0 if half==0 else vDK1}, s[{SK}:{SK+3}], s{sTile} offen offset:{1024*half} nt lds")
        if half == 1:
            kseq[tile] = a.vm_seq; a.e(f"s_add_u32 s{sTile}, s{sTile}, 16384")
    def vdma(tile, half):
        if tile > 15: return
        if half == 0: a.e(f"s_add_u32 m0, s{sM0V}, {(tile%NVS)*16384}"); a.e("s_nop 0")
        a.vm(f"buffer_load_dwordx4 v{vDV}, s[{SV}:{SV+3}], s{sTileV} offen offset:{1024*half} nt lds")
        if half == 1:
            vseq[tile] = a.vm_seq; a.e(f"s_add_u32 s{sTileV}, s{sTileV}, 16384")
    for pi, (t, st, npv, nqk) in enumerate(plan):
        n = npv + nqk
        nxt = plan[pi + 1] if pi + 1 < len(plan) else None
        limit = st + n + (min(PF, nxt[2]) if nxt else 0)
        if t == -1:
            a.c("---- QK(0)")
            a.wait_vm(kseq[0]); a.e("s_barrier")
            vdma(1, 0); vdma(1, 1); vdma(2, 0); vdma(2, 1); kdma(3, 0); kdma(3, 1)
            for j in range(n):
                prefetch(st + j + PF - 1 if j else st + PF - 1, limit)
                allops[st + j].mf(allops[st + j].st)
                prefetch(st + j + PF, limit)
            stamp(a)
            continue
        if t == 16:
            a.c("---- final PV")
            for j in range(n):
                prefetch(st + j + PF - 1, limit)
                allops[st + j].mf(allops[st + j].st)
                prefetch(st + j + PF, limit)
            continue
        uid = UID[0]; UID[0] += 1
        a.c(f"---- iteration t={t}")
        need = [x for x in (kseq.get(t + 1) if t <= 14 else None, vseq.get(t)) if x is not None]
        a.wait_vm(max(need))
        a.e("s_barrier")
        S = vS[t % 2]
        main = softmax_head(S, uid) + softmax_body(S)
        tot = sum(w for _, w, _ in main) + 64
        stt = {"mi": 0, "cv": 0, "cum": 0, "since": {}, "cnt": 0}
        def emit_main():
            txt, w, tag = main[stt["mi"]]; stt["mi"] += 1
            a.e(txt); stt["cum"] += w; stt["cnt"] += 1
            if tag is not None: stt["since"][tag] = stt["cnt"]
        def cvt_ready():
            j = stt["cv"]
            if j >= 16: return False
            e = stt["since"].get(2 * j + 1)
            return e is not None and stt["cnt"] > e
        def emit_cvt():
            j = stt["cv"]; stt["cv"] += 1
            a.e(f"v_cvt_pk_bf16_f32 v{vP+j}, v{S+2*j}, v{S+2*j+1}"); stt["cum"] += 4; stt["cnt"] += 1
        def wopf():
            if t != int(os.environ.get("WOPF", "10")): return
            a.e(f"s_lshl_b32 s54, s{sW}, 11"); a.e(f"s_add_u32 m0, s54, {VRING+5*16384}")
            a.e(f"v_lshlrev_b32 v{vDW0}, 4, v{vLane}"); a.e(f"v_add_u32 v{vDW0}, s54, v{vDW0}")
            a.vm(f"buffer_load_dwordx4 v{vDW0}, s[4:7], 0 offen lds")
            a.vm(f"buffer_load_dwordx4 v{vDW0}, s[4:7], 0 offen offset:1024 lds")
        def wort():
            if not G3 or t != 14: return
            sq = []
            for nb in range(2):
                a.ds(f"ds_read_b64_tr_b16 {vr(vWoT+4*nb,2)}, v{vWoA} offset:{nb*64}")
                sq.append(a.ds(f"ds_read_b64_tr_b16 {vr(vWoT+4*nb+2,2)}, v{vWoA} offset:{nb*64+8192}"))
            stt["wo"] = sq
        def wost():
            if not G3 or t != 14: return
            a.e(f"s_lshl_b32 s54, s{sW}, 19"); a.e("s_lshl_b32 s55, s2, 10"); a.e("s_add_u32 s54, s54, s55"); a.e(f"s_add_u32 s54, s54, {WS2}")
            a.e("s_add_u32 s8, s52, s54"); a.e("s_addc_u32 s9, s53, 0"); a.e("s_mov_b32 s10, 0x80000"); a.e("s_mov_b32 s11, 0x00020000")
            a.e("s_mov_b32 s55, 262144")
            a.wait_ds(stt["wo"][1])
            a.vm(f"buffer_store_dwordx4 {vr(vWoT,4)}, v{vWoS}, s[8:11], 0 offen")
            a.vm(f"buffer_store_dwordx4 {vr(vWoT+4,4)}, v{vWoS}, s[8:11], s55 offen")
        dm = {9: lambda: (wopf(), wort()), 13: wost, 1: lambda: kdma(t + 4, 0), 3: lambda: kdma(t + 4, 1), 5: lambda: vdma(t + 3, 0), 7: lambda: vdma(t + 3, 1)}
        for j in range(n):
            prefetch(st + j + PF - 1, limit)
            allops[st + j].mf(allops[st + j].st)
            prefetch(st + j + PF, limit)
            if j in dm: dm[j]()
            if npv and j == npv - 1: rescale_check(a, uid)
            target = tot * (j + 1) // n
            while stt["cum"] < target:
                if j >= npv - 1 and cvt_ready(): emit_cvt()
                elif stt["mi"] < len(main): emit_main()
                else: break
        while stt["mi"] < len(main): emit_main()
        a.e("s_nop 0")
        while stt["cv"] < 16: emit_cvt()
        if not npv: a.e(f"s_mov_b32 s{sFlag}, 0")
        if t in (0, 12): stamp(a)

STAMP = os.environ.get("STAMP")
stamp_n = [0]
def stamp(a):
    if not STAMP: return
    i = stamp_n[0]; stamp_n[0] += 1
    if i >= 18: return
    rt = os.environ.get("RT") and i in (0, 7)
    a.e(f"{'s_memrealtime' if rt else 's_memtime'} s[{64+2*i}:{65+2*i}]"); a.e("s_waitcnt lgkmcnt(0)")
def stamp_store(a):
    if not STAMP: return
    a.e("s_load_dwordx2 s[56:57], s[0:1], 48"); a.e("s_waitcnt lgkmcnt(0)")
    a.e("s_mov_b32 s58, 256"); a.e("s_mov_b32 s59, 0x00020000")
    a.e("s_cmp_lg_u32 s2, 0"); a.e("s_cbranch_scc1 L_nostamp")
    a.e(f"s_cmp_lg_u32 s{sW}, 0"); a.e("s_cbranch_scc1 L_nostamp")
    a.e("v_mov_b32 v2, 0")
    for i in range(min(18,stamp_n[0])):
        a.e(f"v_mov_b32 v3, s{64+2*i}")
        a.e(f"buffer_store_dword v3, v2, s[56:59], 0 offen offset:{4*i}")
    a.lab("L_nostamp")

def gen_attn(a):
    a.lab("attn_kernel")
    a.e("s_cmp_ge_u32 s2, 256")
    a.e("s_cbranch_scc1 L_attn_done")
    stamp(a)
    a.e("s_load_dwordx4 s[44:47], s[0:1], 0")
    a.e("s_load_dwordx4 s[48:51], s[0:1], 16")
    a.e("s_load_dwordx2 s[52:53], s[0:1], 56")
    if os.environ.get("MAPB"):
        a.e(f"s_and_b32 s{sB}, s2, 7")
        a.e(f"s_lshr_b32 s{sH}, s2, 3")
    else:
        a.e(f"s_lshr_b32 s{sB}, s2, 5")
        a.e(f"s_and_b32 s{sH}, s2, 31")
    a.e(f"s_lshl_b32 s60, s{sB}, 5"); a.e(f"s_add_u32 s60, s60, s{sH}")
    a.e(f"v_lshrrev_b32 v{vT0}, 6, v0")
    a.e(f"v_and_b32 v{vLane}, 63, v0")
    a.e("s_nop 0")
    a.e(f"v_readfirstlane_b32 s{sW}, v{vT0}")
    a.e("s_load_dwordx2 s[56:57], s[0:1], 32")
    earlyL = a.L; lateL = []; srdL = []
    a.L = srdL
    a.e("s_waitcnt lgkmcnt(0)")
    a.e(f"s_lshl_b32 s54, s{sB}, 18")
    a.e(f"s_add_u32 s{SX}, s44, s54"); a.e(f"s_addc_u32 s{SX+1}, s45, 0")
    a.e(f"s_mov_b32 s{SX+2}, 262144"); a.e(f"s_mov_b32 s{SX+3}, 0x00020000")
    a.L = lateL
    if os.environ.get("KVFIX"): a.e("s_and_b32 s60, s60, 7")
    a.e("s_lshl_b32 s54, s60, 18")
    a.e(f"s_add_u32 s{SK}, s46, s54"); a.e(f"s_addc_u32 s{SK+1}, s47, 0")
    a.e(f"s_mov_b32 s{SK+2}, 262144"); a.e(f"s_mov_b32 s{SK+3}, 0x00020000")
    a.e(f"s_add_u32 s{SV}, s48, s54"); a.e(f"s_addc_u32 s{SV+1}, s49, 0")
    a.e(f"s_mov_b32 s{SV+2}, 262144"); a.e(f"s_mov_b32 s{SV+3}, 0x00020000")
    a.L = srdL
    a.e(f"s_lshl_b32 s54, s{sH}, 8")
    a.e(f"s_add_u32 s{SWQ}, s50, s54"); a.e(f"s_addc_u32 s{SWQ+1}, s51, 0")
    a.e(f"s_sub_u32 s{SWQ+2}, 4194304, s54"); a.e(f"s_mov_b32 s{SWQ+3}, 0x00020000")
    a.L = lateL
    a.e(f"s_lshl_b32 s54, s{sB}, 21"); a.e(f"s_lshl_b32 s55, s{sH}, 13"); a.e("s_add_u32 s54, s54, s55")
    a.e(f"s_add_u32 s{SO}, s52, s54"); a.e(f"s_addc_u32 s{SO+1}, s53, 0")
    a.e(f"s_sub_u32 s{SO+2}, 16777216, s54"); a.e(f"s_mov_b32 s{SO+3}, 0x00020000")
    a.e(f"s_mov_b32 s{sC}, {f32hex(SCALE)}")
    a.e("s_lshl_b32 s54, s2, 14")
    a.e("s_add_u32 s4, s56, s54"); a.e("s_addc_u32 s5, s57, 0")
    a.e("s_mov_b32 s6, 16384"); a.e("s_mov_b32 s7, 0x00020000")
    a.L = earlyL
    q, hh, g, r, c4 = 40, 41, 42, 43, 44
    t5, t6, t7 = 45, 46, 47
    a.e(f"v_and_b32 v{q}, 31, v{vLane}")
    a.e(f"v_lshrrev_b32 v{hh}, 5, v{vLane}")
    a.e(f"v_lshrrev_b32 v{g}, 4, v{vLane}")
    a.e(f"v_bfe_u32 v{r}, v{vLane}, 2, 2")
    a.e(f"v_and_b32 v{c4}, 3, v{vLane}")
    a.L = lateL
    a.e(f"v_and_b32 v{t5}, 15, v{q}")
    a.e(f"v_xor_b32 v{t5}, v{t5}, v{hh}")
    for s in range(8):
        a.e(f"v_xor_b32 v{t6}, {2*s}, v{t5}")
        a.e(f"v_lshlrev_b32 v{t6}, 4, v{t6}")
        a.e(f"v_lshl_add_u32 v{vKa+s}, v{q}, 8, v{t6}")
    a.e(f"v_lshrrev_b32 v{t5}, 1, v{g}")
    a.e(f"v_lshl_add_u32 v{t6}, v{t5}, 2, v{r}")
    a.e(f"v_lshlrev_b32 v{t6}, 8, v{t6}")
    a.e(f"v_and_b32 v{t7}, 1, v{g}")
    a.e(f"v_lshl_add_u32 v{t6}, v{t7}, 5, v{t6}")
    a.e(f"v_lshl_add_u32 v{t6}, v{c4}, 3, v{t6}")
    a.e(f"v_add_u32 v{t6}, {VRING}, v{t6}")
    for db in range(4):
        a.e(f"v_xor_b32 v{t7}, {db}, v{r}")
        a.e(f"v_lshl_add_u32 v{vVa+db}, v{t7}, 6, v{t6}")
        a.e(f"v_add_u32 v{vVb+db}, 0x10000, v{vVa+db}")
    a.e(f"v_lshl_add_u32 v{vWoA}, v{hh}, 2, v{r}")
    a.e(f"v_lshlrev_b32 v{vWoA}, 10, v{vWoA}")
    a.e(f"v_and_b32 v{t7}, 1, v{g}")
    a.e(f"v_lshl_add_u32 v{vWoA}, v{t7}, 5, v{vWoA}")
    a.e(f"v_lshl_add_u32 v{vWoA}, v{c4}, 3, v{vWoA}")
    a.e(f"s_lshl_b32 s54, s{sW}, 7"); a.e(f"s_add_u32 s54, s54, {VRING+5*16384}")
    a.e(f"v_add_u32 v{vWoA}, s54, v{vWoA}")
    a.e(f"v_lshlrev_b32 v{vWoS}, 4, v{vLane}")
    a.e(f"v_lshl_add_u32 v{t6}, v{t5}, 3, v{r}")
    a.e(f"v_lshlrev_b32 v{t6}, 8, v{t6}")
    a.e(f"v_and_b32 v{t7}, 1, v{g}")
    a.e(f"v_lshl_add_u32 v{t6}, v{t7}, 5, v{t6}")
    a.e(f"v_and_b32 v{t7}, 1, v{c4}")
    a.e(f"v_lshl_add_u32 v{t6}, v{t7}, 4, v{t6}")
    a.e(f"v_lshrrev_b32 v{t7}, 1, v{c4}")
    a.e(f"v_lshl_add_u32 v{t6}, v{t7}, 3, v{t6}")
    a.e(f"v_add_u32 v{t6}, {WBASE}, v{t6}")
    for db in range(4):
        a.e(f"v_xor_b32 v{t7}, {db}, v{r}")
        a.e(f"v_lshl_add_u32 v{vWa+db}, v{t7}, 6, v{t6}")
    a.L = earlyL
    a.e(f"s_lshl_b32 s54, s{sW}, 3")
    a.e(f"v_add_u32 v{t5}, s54, v{g}")
    a.e(f"v_and_b32 v{t6}, 15, v{vLane}")
    a.e(f"v_and_b32 v{t7}, 15, v{t5}")
    a.e(f"v_xor_b32 v{t7}, v{t7}, v{t6}")
    a.e(f"v_lshlrev_b32 v{t7}, 4, v{t7}")
    a.e(f"v_lshl_add_u32 v{vDK0}, v{t5}, 8, v{t7}")
    a.e(f"v_add_u32 v{t7}, 4, v{t5}")
    a.e(f"v_and_b32 v{t7}, 15, v{t7}")
    a.e(f"v_xor_b32 v{t7}, v{t7}, v{t6}")
    a.e(f"v_lshlrev_b32 v{t7}, 4, v{t7}")
    a.e(f"v_lshl_add_u32 v{vDK1}, v{t5}, 8, v{t7}")
    a.e(f"v_and_b32 v{t7}, 3, v{t5}")
    a.e(f"v_lshlrev_b32 v{t7}, 2, v{t7}")
    a.e(f"v_xor_b32 v{t7}, v{t7}, v{t6}")
    a.e(f"v_lshlrev_b32 v{t7}, 4, v{t7}")
    a.e(f"v_lshl_add_u32 v{vDV}, v{t5}, 8, v{t7}")
    a.e(f"v_lshl_add_u32 v{vDW0}, v{t5}, 13, v{t7}")
    a.e(f"v_add_u32 v{vDW1}, 31744, v{vDW0}")
    a.L = lateL
    a.e(f"s_lshl_b32 s54, s{sW}, 5")
    a.e(f"v_add_u32 v{t5}, s54, v{q}")
    a.e(f"v_lshlrev_b32 v{t5}, 10, v{t5}")
    a.e(f"v_lshl_add_u32 v{vX}, v{hh}, 4, v{t5}")
    a.e(f"s_lshl_b32 s54, s{sW}, 18")
    a.e(f"v_lshlrev_b32 v{t5}, 4, v{vLane}")
    a.e(f"v_add_u32 v{vOo}, s54, v{t5}")
    a.L = earlyL
    a.e(f"s_lshl_b32 s54, s{sW}, 11")
    a.e(f"s_add_u32 s{sM0K}, s54, {KRING}")
    a.e(f"s_add_u32 s{sM0V}, s54, {VRING}")
    a.e(f"s_add_u32 s{sM0W}, s54, {WBASE}")
    a.e(f"s_mov_b32 s{sTile}, 0"); a.e(f"s_mov_b32 s{sTileV}, 0"); a.e(f"s_mov_b32 s{sWqOff}, 0")
    WSLOT = [VRING + 3 * 16384, WBUF, WBUF + 16384]
    XBUF = [KRING + 2 * 16384, VRING + 1 * 16384]
    vXd = 48
    vXa = 52
    vXf = vO
    sXoff = 43
    a.e(f"v_and_b32 v{t6}, 15, v{vLane}")
    a.e(f"v_xor_b32 v{t6}, v{t6}, v{g}")
    a.e(f"s_lshl_b32 s54, s{sW}, 15")
    for i in range(4):
        a.e(f"v_xor_b32 v{t7}, {4*i}, v{t6}")
        a.e(f"v_lshrrev_b32 v{t5}, 3, v{t7}")
        a.e(f"v_lshl_add_u32 v{t5}, v{g}, 1, v{t5}")
        a.e(f"v_lshlrev_b32 v{t5}, 10, v{t5}")
        a.e(f"v_and_b32 v{t7}, 7, v{t7}")
        a.e(f"v_lshl_add_u32 v{t5}, v{t7}, 4, v{t5}")
        a.e(f"v_add_u32 v{t5}, {8192*i - 1024*i}, v{t5}")
        a.e(f"v_add_u32 v{vXd+i}, s54, v{t5}")
    a.L = lateL
    a.e(f"v_lshrrev_b32 v{t5}, 1, v{q}")
    a.e(f"v_and_b32 v{t6}, 1, v{q}")
    a.e(f"v_lshl_add_u32 v{t6}, v{t6}, 3, v{hh}")
    a.e(f"v_xor_b32 v{t6}, v{t6}, v{t5}")
    a.e(f"s_lshl_b32 s54, s{sW}, 12")
    a.e(f"v_lshlrev_b32 v{t5}, 8, v{t5}")
    a.e(f"v_add_u32 v{t5}, s54, v{t5}")
    a.e(f"v_add_u32 v{t5}, 32768, v{t5}")
    for s_ in range(4):
        a.e(f"v_xor_b32 v{t7}, {2*s_}, v{t6}")
        a.e(f"v_lshl_add_u32 v{vXa+s_}, v{t7}, 4, v{t5}")
    a.L = earlyL
    a.e(f"s_lshl_b32 s54, s{sW}, 12")
    ROT = os.environ.get("ROT")
    if ROT:
        a.e(f"s_and_b32 s55, s{sB if ROT=='b' else sH}, 7")
        a.e(f"s_lshl_b32 s{sXoff}, s55, 7")
        a.e(f"s_lshl_b32 s{sWqOff}, s55, 19")
    else:
        a.e(f"s_mov_b32 s{sXoff}, 0")
    a.e(f"s_mov_b32 s63, s54")
    a.L.extend(srdL)
    def xload(c):
        a.e(f"s_add_u32 m0, s63, {XBUF[c%2]}")
        a.e("s_nop 0")
        for i in range(4):
            sq = a.vm(f"buffer_load_dwordx4 v{vXd+i}, s[{SX}:{SX+3}], s{sXoff} offen offset:{i*1024} lds")
        a.e(f"s_add_u32 s{sXoff}, s{sXoff}, 128")
        a.e(f"s_and_b32 s{sXoff}, s{sXoff}, 1023")
        return sq
    def wload(c):
        sq = dma_tile(a, SWQ, vDW0, vDW1, sWqOff, sM0W, WSLOT[c % 3] - WBASE, nt=False)
        a.e(f"s_add_u32 s{sWqOff}, s{sWqOff}, 524288")
        a.e(f"s_and_b32 s{sWqOff}, s{sWqOff}, 0x3fffff")
        return sq
    def kpart(slot):
        sq = dma_tile(a, SK, vDK0, vDK1, sTile, sM0K, slot * 16384); a.e(f"s_add_u32 s{sTile}, s{sTile}, 16384"); return sq
    def vpart(slot):
        sq = dma_tile(a, SV, vDV, vDV, sTileV, sM0V, slot * 16384); a.e(f"s_add_u32 s{sTileV}, s{sTileV}, 16384"); return sq
    kvparts2 = {1: (True, 0), 3: (True, 1), 5: (False, 0), 7: (True, 2)}
    kvparts = {1: lambda: kpart(0), 3: lambda: kpart(1), 5: lambda: vpart(0), 7: lambda: kpart(2)}
    xs = {}
    for c in range(2):
        wload(c); xs[c] = xload(c)
        if c == 0: a.e("s_barrier")
        if c == int(os.environ.get("QPF", "1")):
            a.e("s_lshl_b32 s54, s2, 14"); a.e(f"s_lshl_b32 s55, s{sW}, 11"); a.e("s_add_u32 s54, s54, s55")
            a.e("s_add_u32 s8, s50, s54"); a.e("s_addc_u32 s9, s51, 0"); a.e("s_mov_b32 s10, 2048"); a.e("s_mov_b32 s11, 0x00020000")
            a.e(f"v_lshlrev_b32 v{vP+12}, 4, v{vLane}")
            a.vm(f"buffer_load_dwordx4 {vr(vP,4)}, v{vP+12}, s[8:11], 0 offen")
            a.vm(f"buffer_load_dwordx4 {vr(vP+4,4)}, v{vP+12}, s[8:11], 0 offen offset:1024")
            a.e("s_lshl_b32 s54, s2, 13"); a.e(f"s_lshl_b32 s55, s{sW}, 10"); a.e("s_add_u32 s54, s54, s55")
            a.e("s_add_u32 s8, s44, s54"); a.e("s_addc_u32 s9, s45, 0"); a.e("s_mov_b32 s10, 1024")
            a.vm(f"buffer_load_dwordx4 {vr(vP+8,4)}, v{vP+12}, s[8:11], 0 offen")
    a.L.extend(lateL)
    pool = FragPool()
    QA = vS[0]
    kvseq = {}
    for c in range(8):
        a.c(f"-- qproj chunk {c}")
        a.wait_vm(xs[c])
        if os.environ.get("QST"): stamp(a)
        a.e("s_barrier")
        if os.environ.get("QST") and c < 2: stamp(a)
        for s_ in range(4):
            xq = a.ds(f"ds_read_b128 {vr(vXf+4*s_,4)}, v{vXa+s_} offset:{XBUF[c%2]-KRING-32768}")
        items = [(s, db) for s in range(4) for db in range(4)]
        st = {}
        def rd(j):
            s, db = items[j]
            rr = pool.get()
            base = (WSLOT[c % 3] - WBASE) + s * 4096
            a.ds(f"ds_read_b64_tr_b16 {vr(rr,2)}, v{vWa+db} offset:{base}")
            seq = a.ds(f"ds_read_b64_tr_b16 {vr(rr+2,2)}, v{vWa+db} offset:{base+1024}")
            st[j] = (rr, seq)
        PF = NF - 1
        for x in range(PF): rd(x)
        a.wait_ds(xq)
        steps = []
        if c + 2 < 8:
            def w_(half):
                if half == 0: a.e(f"s_add_u32 m0, s{sM0W}, {WSLOT[(c+2)%3]-WBASE}"); a.e("s_nop 0")
                a.vm(f"buffer_load_dwordx4 v{vDW0 if half==0 else vDW1}, s[{SWQ}:{SWQ+3}], s{sWqOff} offen offset:{1024*half} lds")
                if half == 1:
                    a.e(f"s_add_u32 s{sWqOff}, s{sWqOff}, 524288"); a.e(f"s_and_b32 s{sWqOff}, s{sWqOff}, 0x3fffff")
            def x_(i):
                if i == 0: a.e(f"s_add_u32 m0, s63, {XBUF[c%2]}"); a.e("s_nop 0")
                sq = a.vm(f"buffer_load_dwordx4 v{vXd+i}, s[{SX}:{SX+3}], s{sXoff} offen offset:{i*1024} lds")
                if i == 3:
                    a.e(f"s_add_u32 s{sXoff}, s{sXoff}, 128"); a.e(f"s_and_b32 s{sXoff}, s{sXoff}, 1023"); xs[c + 2] = sq
            steps += [lambda: w_(0), lambda: w_(1), lambda: x_(0), lambda: x_(1), lambda: x_(2), lambda: x_(3)]
        if c in kvparts:
            isk, slot = kvparts2[c]
            def kv_(half):
                srd, vo, so, m0r = (SK, (vDK0, vDK1), sTile, sM0K) if isk else (SV, (vDV, vDV), sTileV, sM0V)
                if half == 0: a.e(f"s_add_u32 m0, s{m0r}, {slot*16384}"); a.e("s_nop 0")
                sq = a.vm(f"buffer_load_dwordx4 v{vo[half]}, s[{srd}:{srd+3}], s{so} offen offset:{1024*half} nt lds")
                if half == 1:
                    a.e(f"s_add_u32 s{so}, s{so}, 16384"); kvseq[c] = sq
            steps += [lambda: kv_(0), lambda: kv_(1)]
        for j, (s, db) in enumerate(items):
            rr, seq = st[j]
            a.wait_ds(seq)
            acc = QA + db * 16
            cin = "0" if (c == 0 and s == 0) else vr(acc, 16)
            a.e(f"v_mfma_f32_32x32x16_bf16 {vr(acc,16)}, {vr(rr,4)}, {vr(vXf+4*s,4)}, {cin}")
            if j + PF < len(items): rd(j + PF)
            if j % 2 == 0 and j // 2 < len(steps): steps[j // 2]()
    stamp(a)
    a.e("s_nop 7"); a.e("s_nop 7")
    for db in range(4):
        for j in range(8):
            a.e(f"v_cvt_pk_bf16_f32 v{vQ+db*8+j}, v{QA+db*16+2*j}, v{QA+db*16+2*j+1}")
    a.e(f"v_mov_b32 v{vM}, 0xff800000")
    a.e(f"s_mov_b32 s{sThr}, {f32hex(8.0/SCALE)}"); a.e(f"s_mov_b32 s{sFlag}, 0")
    a.e(f"v_mov_b32 v{vLs}, 0")
    attn_main(a, pool, {0: kvseq[1], 1: kvseq[3], 2: kvseq[7]}, {0: kvseq[5]})
    stamp(a)
    a.e(f"v_mov_b32 v{vT1}, v{vLs}")
    a.e("s_nop 1")
    a.e(f"v_permlane32_swap_b32 v{vLs}, v{vT1}")
    a.e(f"v_add_f32 v{vLs}, v{vLs}, v{vT1}")
    a.e(f"v_rcp_f32 v{vAl}, v{vLs}")
    a.e("s_nop 7"); a.e("s_nop 7")
    a.e("s_mov_b32 s54, 4096")
    for db in range(4):
        for u in range(2):
            base = vO + db * 16 + 8 * u
            for j in range(8):
                a.e(f"v_mul_f32 v{base+j}, v{base+j}, v{vAl}")
            dst = vP + (db * 2 + u) % 4 * 4
            for j in range(4):
                a.e(f"v_cvt_pk_bf16_f32 v{dst+j}, v{base+2*j}, v{base+2*j+1}")
            idx = db * 2 + u
            so = "0" if idx < 4 else "s54"
            a.e(f"buffer_store_dwordx4 {vr(dst,4)}, v{vOo}, s[{SO}:{SO+3}], {so} offen offset:{(idx%4)*1024}{os.environ.get('OST','')}")
    a.e("s_waitcnt vmcnt(0)")
    stamp(a); stamp(a)
    stamp_store(a)
    a.lab("L_attn_done")
    a.e("s_endpgm")
    for x in RARE: a.e(x)

def gen_gemm(a):
    a.lab("oproj_kernel")
    vL = 1; vBo0 = 2; vBo1 = 3; vD = 4; vA0 = 5; vA1 = 6; vt0 = 7; vt1 = 8; vt2 = 9; vRed = 10; vOut = 11
    vB = 16
    vAcc = 112
    vFr = 176
    NFR = 8
    SOf = 12; SWo = 16; SOut = 20
    sWv = 34; sCh = 36; sWoOff = 37; sTmp = 38
    a.e("s_cmp_ge_u32 s2, 256")
    a.e("s_cbranch_scc1 L_gemm_done")
    a.e("s_load_dwordx4 s[44:47], s[0:1], 32")
    a.e("s_load_dwordx2 s[52:53], s[0:1], 56")
    if os.environ.get("MAPB"):
        a.e("s_and_b32 s3, s2, 7"); a.e("s_lshl_b32 s3, s3, 2"); a.e("s_bfe_u32 s33, s2, 0x20003"); a.e("s_add_u32 s3, s3, s33")
        a.e("s_lshr_b32 s33, s2, 5")
    elif os.environ.get("MAP2"):
        a.e("s_bfe_u32 s3, s2, 0x20001"); a.e("s_lshl_b32 s3, s3, 3"); a.e("s_lshr_b32 s33, s2, 5"); a.e("s_add_u32 s3, s3, s33")
        a.e("s_and_b32 s33, s2, 1"); a.e("s_lshl_b32 s33, s33, 2"); a.e("s_bfe_u32 s54, s2, 0x20003"); a.e("s_add_u32 s33, s33, s54")
    else:
        a.e("s_lshr_b32 s3, s2, 6"); a.e("s_lshl_b32 s3, s3, 3"); a.e("s_and_b32 s33, s2, 7"); a.e("s_add_u32 s3, s3, s33")
        a.e("s_bfe_u32 s33, s2, 0x30003")
    a.e(f"v_lshrrev_b32 v{vt0}, 6, v0")
    a.e(f"v_and_b32 v{vL}, 63, v0")
    a.e("s_nop 0")
    a.e(f"v_readfirstlane_b32 s{sWv}, v{vt0}")
    a.e("s_waitcnt lgkmcnt(0)")
    a.e("s_lshl_b32 s54, s3, 19"); a.e(f"s_lshl_b32 s55, s{sWv}, 16"); a.e("s_add_u32 s54, s54, s55")
    a.e(f"s_add_u32 s{SOf}, s52, s54"); a.e(f"s_addc_u32 s{SOf+1}, s53, 0")
    a.e(f"s_sub_u32 s{SOf+2}, 16777216, s54"); a.e(f"s_mov_b32 s{SOf+3}, 0x00020000")
    a.e(f"s_lshl_b32 s54, s{sWv}, 20"); a.e("s_lshl_b32 s55, s33, 7"); a.e("s_add_u32 s54, s54, s55")
    a.e(f"s_add_u32 s{SWo}, s44, s54"); a.e(f"s_addc_u32 s{SWo+1}, s45, 0")
    a.e(f"s_sub_u32 s{SWo+2}, 4194304, s54"); a.e(f"s_mov_b32 s{SWo+3}, 0x00020000")
    a.e("s_lshl_b32 s54, s3, 16"); a.e("s_add_u32 s54, s54, s55")
    a.e(f"s_add_u32 s{SOut}, s46, s54"); a.e(f"s_addc_u32 s{SOut+1}, s47, 0")
    a.e(f"s_sub_u32 s{SOut+2}, 2097152, s54"); a.e(f"s_mov_b32 s{SOut+3}, 0x00020000")
    a.e(f"v_lshlrev_b32 v{vBo0}, 4, v{vL}")
    a.e(f"v_add_u32 v{vBo1}, 262144, v{vBo0}")
    a.e(f"v_lshrrev_b32 v{vt0}, 3, v{vL}")
    a.e(f"v_and_b32 v{vt1}, 7, v{vL}")
    a.e(f"v_bfe_u32 v{vt2}, v{vL}, 4, 1")
    a.e(f"v_lshlrev_b32 v{vt2}, 2, v{vt2}")
    a.e(f"v_xor_b32 v{vt1}, v{vt1}, v{vt2}")
    a.e(f"v_lshlrev_b32 v{vt1}, 4, v{vt1}")
    a.e(f"v_lshl_add_u32 v{vD}, v{vt0}, 10, v{vt1}")
    a.e(f"v_lshrrev_b32 v{vt0}, 5, v{vL}")
    a.e(f"v_bfe_u32 v{vt1}, v{vL}, 2, 2")
    a.e(f"v_lshl_add_u32 v{vt0}, v{vt0}, 2, v{vt1}")
    a.e(f"v_lshlrev_b32 v{vt0}, 7, v{vt0}")
    a.e(f"v_bfe_u32 v{vt2}, v{vL}, 4, 1")
    a.e(f"v_lshl_add_u32 v{vt0}, v{vt2}, 5, v{vt0}")
    a.e(f"v_and_b32 v{vt2}, 3, v{vL}")
    a.e(f"v_lshl_add_u32 v{vt0}, v{vt2}, 3, v{vt0}")
    a.e(f"s_mul_i32 s54, s{sWv}, 24576")
    a.e(f"v_add_u32 v{vt0}, s54, v{vt0}")
    a.e(f"v_lshrrev_b32 v{vt1}, 1, v{vt1}")
    a.e(f"v_lshl_add_u32 v{vA0}, v{vt1}, 6, v{vt0}")
    a.e(f"v_xor_b32 v{vt1}, 1, v{vt1}")
    a.e(f"v_lshl_add_u32 v{vA1}, v{vt1}, 6, v{vt0}")
    a.e(f"s_mov_b32 s{sCh}, 0"); a.e(f"s_mov_b32 s{sWoOff}, 0")
    a.e(f"s_mov_b32 s39, s54")
    def load_chunk(buf):
        for mb in range(2):
            for s in range(4):
                if os.environ.get("NOB"): continue
                a.e(f"buffer_load_dwordx4 {vr(vB+buf*32+mb*16+s*4,4)}, v{vBo0 if mb==0 else vBo1}, s[{SOf}:{SOf+3}], s{sCh} offen offset:{s*1024}{os.environ.get('OLD','')}")
        a.e(f"s_add_u32 s{sCh}, s{sCh}, 4096")
        for i in range(8):
            a.e(f"s_add_u32 m0, s39, {buf*8192+i*1024}")
            a.e(f"s_add_u32 s{sTmp}, s{sWoOff}, {i*8192}")
            if not os.environ.get("NOA"): a.e(f"buffer_load_dwordx4 v{vD}, s[{SWo}:{SWo+3}], s{sTmp} offen{os.environ.get('WLD','')} lds")
        a.e(f"s_add_u32 s{sWoOff}, s{sWoOff}, 65536")
    load_chunk(0); load_chunk(1)
    pi = [0]
    def getf():
        r = vFr + 4 * (pi[0] % NFR); pi[0] += 1; return r
    for ch in range(16):
        buf = ch % 3
        a.c(f"-- chunk {ch}")
        if ch + 2 < 16:
            load_chunk((ch + 2) % 3)
            a.e("s_waitcnt vmcnt(32)")
        elif ch + 1 < 16:
            a.e("s_waitcnt vmcnt(16)")
        else:
            a.e("s_waitcnt vmcnt(0)")
        items = [(s, nb) for s in range(4) for nb in range(2)]
        st = {}
        def rd(j):
            s, nb = items[j]
            rr = getf()
            base = buf * 8192 + 16 * s * 128
            a.ds(f"ds_read_b64_tr_b16 {vr(rr,2)}, v{vA0 if nb==0 else vA1} offset:{base}")
            seq = a.ds(f"ds_read_b64_tr_b16 {vr(rr+2,2)}, v{vA0 if nb==0 else vA1} offset:{base+1024}")
            st[j] = (rr, seq)
        PF = 4
        for x in range(PF): rd(x)
        for j, (s, nb) in enumerate(items):
            rr, seq = st[j]
            a.wait_ds(seq)
            for mb in range(2):
                acc = vAcc + (nb * 2 + mb) * 16
                cin = "0" if (ch == 0 and s == 0) else vr(acc, 16)
                a.e(f"v_mfma_f32_32x32x16_bf16 {vr(acc,16)}, {vr(rr,4)}, {vr(vB+buf*32+mb*16+s*4,4)}, {cin}")
            if j + PF < len(items): rd(j + PF)
    a.e("s_nop 7"); a.e("s_nop 7")
    a.e("s_barrier")
    a.e(f"s_lshl_b32 s54, s{sWv}, 14")
    a.e(f"v_lshlrev_b32 v{vt0}, 4, v{vL}")
    a.e(f"v_add_u32 v{vRed}, s54, v{vt0}")
    for qd in range(16):
        a.e(f"ds_write_b128 v{vRed}, {vr(vAcc+qd*4,4)} offset:{qd*1024}")
    a.e("s_waitcnt lgkmcnt(0)")
    a.e("s_barrier")
    a.e(f"s_lshl_b32 s54, s{sWv}, 12")
    a.e(f"v_add_u32 v{vRed}, s54, v{vt0}")
    for src in range(4):
        for qd in range(4):
            a.e(f"ds_read_b128 {vr(vB+src*16+qd*4,4)}, v{vRed} offset:{src*16384+qd*1024}")
    a.e("s_waitcnt lgkmcnt(0)")
    for i in range(16):
        a.e(f"v_add_f32 v{vB+i}, v{vB+i}, v{vB+16+i}")
        a.e(f"v_add_f32 v{vB+32+i}, v{vB+32+i}, v{vB+48+i}")
    for i in range(16):
        a.e(f"v_add_f32 v{vB+i}, v{vB+i}, v{vB+32+i}")
    a.e(f"s_and_b32 s54, s{sWv}, 1"); a.e("s_lshl_b32 s54, s54, 15")
    a.e(f"s_lshr_b32 s55, s{sWv}, 1"); a.e("s_lshl_b32 s55, s55, 6"); a.e("s_add_u32 s54, s54, s55")
    a.e(f"v_and_b32 v{vt1}, 31, v{vL}")
    a.e(f"v_lshlrev_b32 v{vt1}, 10, v{vt1}")
    a.e(f"v_lshrrev_b32 v{vt2}, 5, v{vL}")
    a.e(f"v_lshl_add_u32 v{vt1}, v{vt2}, 3, v{vt1}")
    a.e(f"v_add_u32 v{vOut}, s54, v{vt1}")
    for q4 in range(4):
        a.e(f"v_cvt_pk_bf16_f32 v{vB+64+2*q4}, v{vB+4*q4}, v{vB+4*q4+1}")
        a.e(f"v_cvt_pk_bf16_f32 v{vB+64+2*q4+1}, v{vB+4*q4+2}, v{vB+4*q4+3}")
        a.e(f"buffer_store_dwordx2 {vr(vB+64+2*q4,2)}, v{vOut}, s[{SOut}:{SOut+3}], 0 offen offset:{q4*16}")
    a.lab("L_gemm_done")
    a.e("s_endpgm")

def gen_gemm2(a):
    a.lab("oproj_kernel")
    vL = 1; vBo0 = 2; vBo1 = 3; vD = 4; vA0 = 5; vA1 = 6; vt0 = 7; vt1 = 8; vt2 = 9; vRed = 10; vOut = 11
    NB = 5; PFD = 4
    vB = 16
    vAcc = 96
    vFr = 160
    NFR = 8
    SOf = 12; SWo = 16; SOut = 20
    sWv = 34; sCh = 36; sWoOff = 37; sTmp = 38
    a.e("s_cmp_ge_u32 s2, 256")
    a.e("s_cbranch_scc1 L_gemm_done")
    a.e("s_load_dwordx4 s[44:47], s[0:1], 32")
    a.e("s_load_dwordx2 s[52:53], s[0:1], 56")
    a.e("s_lshr_b32 s3, s2, 6"); a.e("s_lshl_b32 s3, s3, 3"); a.e("s_and_b32 s33, s2, 7"); a.e("s_add_u32 s3, s3, s33")
    a.e("s_bfe_u32 s33, s2, 0x30003")
    if os.environ.get("FIXT") in ("m", "mn"): a.e("s_mov_b32 s3, 0")
    if os.environ.get("FIXT") in ("n", "mn"): a.e("s_mov_b32 s33, 0")
    a.e(f"v_lshrrev_b32 v{vt0}, 6, v0")
    a.e(f"v_and_b32 v{vL}, 63, v0")
    a.e("s_nop 0")
    a.e(f"v_readfirstlane_b32 s{sWv}, v{vt0}")
    a.e(f"v_lshlrev_b32 v{vBo0}, 4, v{vL}")
    a.e(f"v_add_u32 v{vBo1}, 262144, v{vBo0}")
    a.e(f"v_lshrrev_b32 v{vt0}, 3, v{vL}")
    a.e(f"v_and_b32 v{vt1}, 7, v{vL}")
    a.e(f"v_bfe_u32 v{vt2}, v{vL}, 4, 1")
    a.e(f"v_lshlrev_b32 v{vt2}, 2, v{vt2}")
    a.e(f"v_xor_b32 v{vt1}, v{vt1}, v{vt2}")
    a.e(f"v_lshlrev_b32 v{vt1}, 4, v{vt1}")
    a.e(f"v_lshl_add_u32 v{vD}, v{vt0}, 10, v{vt1}")
    a.e("s_waitcnt lgkmcnt(0)")
    a.e("s_lshl_b32 s54, s3, 19"); a.e(f"s_lshl_b32 s55, s{sWv}, 15"); a.e("s_add_u32 s54, s54, s55")
    a.e(f"s_add_u32 s{SOf}, s52, s54"); a.e(f"s_addc_u32 s{SOf+1}, s53, 0")
    a.e(f"s_sub_u32 s{SOf+2}, 16777216, s54"); a.e(f"s_mov_b32 s{SOf+3}, 0x00020000")
    a.e(f"s_lshl_b32 s54, s{sWv}, 19"); a.e("s_lshl_b32 s55, s33, 7"); a.e("s_add_u32 s54, s54, s55")
    a.e(f"s_add_u32 s{SWo}, s44, s54"); a.e(f"s_addc_u32 s{SWo+1}, s45, 0")
    a.e(f"s_sub_u32 s{SWo+2}, 4194304, s54"); a.e(f"s_mov_b32 s{SWo+3}, 0x00020000")
    a.e(f"s_mov_b32 s{sCh}, 0"); a.e(f"s_mov_b32 s{sWoOff}, 0")
    a.e(f"s_mul_i32 s39, s{sWv}, {NB*4096}")
    def load_chunk(buf):
        for i in range(4):
            a.e(f"s_add_u32 m0, s39, {buf*4096+i*1024}")
            a.e(f"s_add_u32 s{sTmp}, s{sWoOff}, {i*8192}")
            a.e(f"buffer_load_dwordx4 v{vD}, s[{SWo}:{SWo+3}], s{sTmp} offen lds")
        a.e(f"s_add_u32 s{sWoOff}, s{sWoOff}, 32768")
        for mb in range(2):
            for s_ in range(2):
                a.e(f"buffer_load_dwordx4 {vr(vB+buf*16+mb*8+s_*4,4)}, v{vBo0 if mb==0 else vBo1}, s[{SOf}:{SOf+3}], s{sCh} offen offset:{s_*1024}")
        a.e(f"s_add_u32 s{sCh}, s{sCh}, 2048")
    for c in range(PFD): load_chunk(c)
    a.e("s_lshl_b32 s54, s3, 16"); a.e("s_lshl_b32 s55, s33, 7"); a.e("s_add_u32 s54, s54, s55")
    a.e(f"s_add_u32 s{SOut}, s46, s54"); a.e(f"s_addc_u32 s{SOut+1}, s47, 0")
    a.e(f"s_sub_u32 s{SOut+2}, 2097152, s54"); a.e(f"s_mov_b32 s{SOut+3}, 0x00020000")
    a.e(f"v_lshrrev_b32 v{vt0}, 5, v{vL}")
    a.e(f"v_bfe_u32 v{vt1}, v{vL}, 2, 2")
    a.e(f"v_lshl_add_u32 v{vt0}, v{vt0}, 2, v{vt1}")
    a.e(f"v_lshlrev_b32 v{vt0}, 7, v{vt0}")
    a.e(f"v_bfe_u32 v{vt2}, v{vL}, 4, 1")
    a.e(f"v_lshl_add_u32 v{vt0}, v{vt2}, 5, v{vt0}")
    a.e(f"v_and_b32 v{vt2}, 3, v{vL}")
    a.e(f"v_lshl_add_u32 v{vt0}, v{vt2}, 3, v{vt0}")
    a.e(f"v_add_u32 v{vt0}, s39, v{vt0}")
    a.e(f"v_lshrrev_b32 v{vt1}, 1, v{vt1}")
    a.e(f"v_lshl_add_u32 v{vA0}, v{vt1}, 6, v{vt0}")
    a.e(f"v_xor_b32 v{vt1}, 1, v{vt1}")
    a.e(f"v_lshl_add_u32 v{vA1}, v{vt1}, 6, v{vt0}")
    pi = [0]
    def getf():
        r = vFr + 4 * (pi[0] % NFR); pi[0] += 1; return r
    NCH = 16
    for ch in range(NCH):
        buf = ch % NB
        a.c(f"-- chunk {ch}")
        if ch + PFD < NCH: load_chunk((ch + PFD) % NB)
        rem = min(PFD, NCH - 1 - ch)
        a.e(f"s_waitcnt vmcnt({8*rem})")
        items = [(s_, nb) for s_ in range(2) for nb in range(2)]
        st = {}
        for j, (s_, nb) in enumerate(items):
            rr = getf()
            base = buf * 4096 + s_ * 2048
            a.ds(f"ds_read_b64_tr_b16 {vr(rr,2)}, v{vA0 if nb==0 else vA1} offset:{base}")
            seq = a.ds(f"ds_read_b64_tr_b16 {vr(rr+2,2)}, v{vA0 if nb==0 else vA1} offset:{base+1024}")
            st[j] = (rr, seq)
        for j, (s_, nb) in enumerate(items):
            rr, seq = st[j]
            a.wait_ds(seq)
            for mb in range(2):
                acc = vAcc + (nb * 2 + mb) * 16
                cin = "0" if (ch == 0 and s_ == 0) else vr(acc, 16)
                a.e(f"v_mfma_f32_32x32x16_bf16 {vr(acc,16)}, {vr(rr,4)}, {vr(vB+buf*16+mb*8+s_*4,4)}, {cin}")
    a.e("s_nop 7"); a.e("s_nop 7")
    a.e("s_barrier")
    a.e(f"s_lshl_b32 s54, s{sWv}, 14")
    a.e(f"v_lshlrev_b32 v{vt0}, 4, v{vL}")
    a.e(f"v_add_u32 v{vRed}, s54, v{vt0}")
    for qd in range(16):
        a.e(f"ds_write_b128 v{vRed}, {vr(vAcc+qd*4,4)} offset:{qd*1024}")
    a.e("s_waitcnt lgkmcnt(0)")
    a.e("s_barrier")
    a.e(f"s_lshl_b32 s54, s{sWv}, 11")
    a.e(f"v_add_u32 v{vRed}, s54, v{vt0}")
    a.e(f"v_add_u32 v{vt1}, 0x10000, v{vRed}")
    for src in range(8):
        for qd in range(2):
            a.e(f"ds_read_b128 {vr(vB+src*8+qd*4,4)}, v{vRed if src < 4 else vt1} offset:{(src%4)*16384+qd*1024}")
    a.e("s_waitcnt lgkmcnt(0)")
    for i in range(8):
        for p_ in range(4):
            a.e(f"v_add_f32 v{vB+16*p_+i}, v{vB+16*p_+i}, v{vB+16*p_+8+i}")
    for i in range(8):
        a.e(f"v_add_f32 v{vB+i}, v{vB+i}, v{vB+16+i}")
        a.e(f"v_add_f32 v{vB+32+i}, v{vB+32+i}, v{vB+48+i}")
    for i in range(8):
        a.e(f"v_add_f32 v{vB+i}, v{vB+i}, v{vB+32+i}")
    a.e(f"s_bfe_u32 s54, s{sWv}, 0x10001"); a.e("s_lshl_b32 s54, s54, 15")
    a.e(f"s_lshr_b32 s55, s{sWv}, 2"); a.e("s_lshl_b32 s55, s55, 6"); a.e("s_add_u32 s54, s54, s55")
    a.e(f"s_and_b32 s55, s{sWv}, 1"); a.e("s_lshl_b32 s55, s55, 5"); a.e("s_add_u32 s54, s54, s55")
    a.e(f"v_and_b32 v{vt1}, 31, v{vL}")
    a.e(f"v_lshlrev_b32 v{vt1}, 10, v{vt1}")
    a.e(f"v_lshrrev_b32 v{vt2}, 5, v{vL}")
    a.e(f"v_lshl_add_u32 v{vt1}, v{vt2}, 3, v{vt1}")
    a.e(f"v_add_u32 v{vOut}, s54, v{vt1}")
    for q4 in range(2):
        a.e(f"v_cvt_pk_bf16_f32 v{vB+64+2*q4}, v{vB+4*q4}, v{vB+4*q4+1}")
        a.e(f"v_cvt_pk_bf16_f32 v{vB+64+2*q4+1}, v{vB+4*q4+2}, v{vB+4*q4+3}")
        a.e(f"buffer_store_dwordx2 {vr(vB+64+2*q4,2)}, v{vOut}, s[{SOut}:{SOut+3}], 0 offen offset:{q4*16}")
    a.lab("L_gemm_done")
    a.e("s_endpgm")

def gen_gemm3(a):
    a.lab("oproj_kernel")
    vL = 1; vBo0 = 2; vBo1 = 3; vt0 = 7; vt1 = 8; vt2 = 9; vRed = 10; vOut = 11
    NB = 5; PFD = 4
    vB = 16
    vAcc = 176
    SOf = 12; SWo = 16; SOut = 20
    sWv = 34; sCh = 36
    a.e("s_cmp_ge_u32 s2, 256")
    a.e("s_cbranch_scc1 L_gemm_done")
    a.e("s_load_dwordx2 s[46:47], s[0:1], 40")
    a.e("s_load_dwordx2 s[52:53], s[0:1], 56")
    a.e("s_lshr_b32 s3, s2, 6"); a.e("s_lshl_b32 s3, s3, 3"); a.e("s_and_b32 s33, s2, 7"); a.e("s_add_u32 s3, s3, s33")
    a.e("s_bfe_u32 s33, s2, 0x30003")
    a.e(f"v_lshrrev_b32 v{vt0}, 6, v0")
    a.e(f"v_and_b32 v{vL}, 63, v0")
    a.e("s_nop 0")
    a.e(f"v_readfirstlane_b32 s{sWv}, v{vt0}")
    a.e(f"v_lshlrev_b32 v{vBo0}, 4, v{vL}")
    a.e(f"v_add_u32 v{vBo1}, 262144, v{vBo0}")
    a.e("s_waitcnt lgkmcnt(0)")
    a.e("s_lshl_b32 s54, s3, 19"); a.e(f"s_lshl_b32 s55, s{sWv}, 15"); a.e("s_add_u32 s54, s54, s55")
    a.e(f"s_add_u32 s{SOf}, s52, s54"); a.e(f"s_addc_u32 s{SOf+1}, s53, 0")
    a.e(f"s_sub_u32 s{SOf+2}, 16777216, s54"); a.e(f"s_mov_b32 s{SOf+3}, 0x00020000")
    a.e("s_lshl_b32 s54, s33, 19"); a.e("s_add_u32 s54, s54, s55")
    a.e(f"s_sub_u32 s{SWo+2}, 4194304, s54")
    a.e(f"s_add_u32 s54, s54, {WS2}")
    a.e(f"s_add_u32 s{SWo}, s52, s54"); a.e(f"s_addc_u32 s{SWo+1}, s53, 0")
    a.e(f"s_mov_b32 s{SWo+3}, 0x00020000")
    a.e(f"s_mov_b32 s{sCh}, 0")
    def load_chunk(buf):
        for op, srd in ((0, SOf), (1, SWo)):
            for mb in range(2):
                for s_ in range(2):
                    a.e(f"buffer_load_dwordx4 {vr(vB+buf*32+op*16+mb*8+s_*4,4)}, v{vBo0 if mb==0 else vBo1}, s[{srd}:{srd+3}], s{sCh} offen offset:{s_*1024}")
        a.e(f"s_add_u32 s{sCh}, s{sCh}, 2048")
    for c in range(PFD): load_chunk(c)
    a.e("s_lshl_b32 s54, s3, 16"); a.e("s_lshl_b32 s55, s33, 7"); a.e("s_add_u32 s54, s54, s55")
    a.e(f"s_add_u32 s{SOut}, s46, s54"); a.e(f"s_addc_u32 s{SOut+1}, s47, 0")
    a.e(f"s_sub_u32 s{SOut+2}, 2097152, s54"); a.e(f"s_mov_b32 s{SOut+3}, 0x00020000")
    NCH = 16
    for ch in range(NCH):
        buf = ch % NB
        a.c(f"-- chunk {ch}")
        if ch + PFD < NCH: load_chunk((ch + PFD) % NB)
        rem = min(PFD, NCH - 1 - ch)
        a.e(f"s_waitcnt vmcnt({8*rem})")
        for s_ in range(2):
            for nb in range(2):
                for mb in range(2):
                    acc = vAcc + (nb * 2 + mb) * 16
                    cin = "0" if (ch == 0 and s_ == 0) else vr(acc, 16)
                    a.e(f"v_mfma_f32_32x32x16_bf16 {vr(acc,16)}, {vr(vB+buf*32+16+nb*8+s_*4,4)}, {vr(vB+buf*32+mb*8+s_*4,4)}, {cin}")
    a.e("s_nop 7"); a.e("s_nop 7")
    a.e(f"s_lshl_b32 s54, s{sWv}, 14")
    a.e(f"v_lshlrev_b32 v{vt0}, 4, v{vL}")
    a.e(f"v_add_u32 v{vRed}, s54, v{vt0}")
    for qd in range(16):
        a.e(f"ds_write_b128 v{vRed}, {vr(vAcc+qd*4,4)} offset:{qd*1024}")
    a.e("s_waitcnt lgkmcnt(0)")
    a.e("s_barrier")
    a.e(f"s_lshl_b32 s54, s{sWv}, 11")
    a.e(f"v_add_u32 v{vRed}, s54, v{vt0}")
    a.e(f"v_add_u32 v{vt1}, 0x10000, v{vRed}")
    for src in range(8):
        for qd in range(2):
            a.e(f"ds_read_b128 {vr(vB+src*8+qd*4,4)}, v{vRed if src < 4 else vt1} offset:{(src%4)*16384+qd*1024}")
    a.e("s_waitcnt lgkmcnt(0)")
    for i in range(8):
        for p_ in range(4):
            a.e(f"v_add_f32 v{vB+16*p_+i}, v{vB+16*p_+i}, v{vB+16*p_+8+i}")
    for i in range(8):
        a.e(f"v_add_f32 v{vB+i}, v{vB+i}, v{vB+16+i}")
        a.e(f"v_add_f32 v{vB+32+i}, v{vB+32+i}, v{vB+48+i}")
    for i in range(8):
        a.e(f"v_add_f32 v{vB+i}, v{vB+i}, v{vB+32+i}")
    a.e(f"s_bfe_u32 s54, s{sWv}, 0x10001"); a.e("s_lshl_b32 s54, s54, 15")
    a.e(f"s_lshr_b32 s55, s{sWv}, 2"); a.e("s_lshl_b32 s55, s55, 6"); a.e("s_add_u32 s54, s54, s55")
    a.e(f"s_and_b32 s55, s{sWv}, 1"); a.e("s_lshl_b32 s55, s55, 5"); a.e("s_add_u32 s54, s54, s55")
    a.e(f"v_and_b32 v{vt1}, 31, v{vL}")
    a.e(f"v_lshlrev_b32 v{vt1}, 10, v{vt1}")
    a.e(f"v_lshrrev_b32 v{vt2}, 5, v{vL}")
    a.e(f"v_lshl_add_u32 v{vt1}, v{vt2}, 3, v{vt1}")
    a.e(f"v_add_u32 v{vOut}, s54, v{vt1}")
    for q4 in range(2):
        a.e(f"v_cvt_pk_bf16_f32 v{vB+64+2*q4}, v{vB+4*q4}, v{vB+4*q4+1}")
        a.e(f"v_cvt_pk_bf16_f32 v{vB+64+2*q4+1}, v{vB+4*q4+2}, v{vB+4*q4+3}")
        a.e(f"buffer_store_dwordx2 {vr(vB+64+2*q4,2)}, v{vOut}, s[{SOut}:{SOut+3}], 0 offen offset:{q4*16}")
    a.lab("L_gemm_done")
    a.e("s_endpgm")

HDR = """; Kernarg layout for this problem (64 bytes, ptrs only, base s[0:1]):
;   offset   0: d_in[0] x  shape=(8, 256, 512) dtype=bfloat16
;   offset   8: d_in[1] k_cache  shape=(8, 32, 1024, 128) dtype=bfloat16
;   offset  16: d_in[2] v_cache  shape=(8, 32, 1024, 128) dtype=bfloat16
;   offset  24: d_in[3] wq  shape=(512, 4096) dtype=bfloat16
;   offset  32: d_in[4] wo  shape=(4096, 512) dtype=bfloat16
;   offset  40: d_out     shape=(8, 256, 512) dtype=bfloat16
;   offset  48: d_debug   256 bytes
; @launch kernel=attn_kernel grid=(256,1,1) block=(512,1,1) lds=163840
; @launch kernel=oproj_kernel grid=(256,1,1) block=(BLK2,1,1) lds=LDS2
.amdgcn_target "amdgcn-amd-amdhsa--gfx950"
.text
"""
def kd(name, nv, ns=100):
    return f""".amdhsa_kernel {name}
  .amdhsa_next_free_vgpr {nv}
  .amdhsa_next_free_sgpr {ns}
  .amdhsa_accum_offset {nv}
  .amdhsa_group_segment_fixed_size 0
  .amdhsa_kernarg_size 64
  .amdhsa_user_sgpr_count 2
  .amdhsa_user_sgpr_kernarg_segment_ptr 1
  .amdhsa_system_sgpr_workgroup_id_x 1
  .amdhsa_float_denorm_mode_32 3
.end_amdhsa_kernel
"""
def main():
    G2 = not os.environ.get("OLDG")
    out = HDR.replace("BLK2", "512" if G2 else "256").replace("LDS2", "131072" if G3 else "163840" if G2 else "98304")
    a = A(); gen_attn(a)
    out += ".globl attn_kernel\n.p2align 8\n.type attn_kernel,@function\n" + "\n".join(a.L) + "\n"
    b = A(); (gen_gemm3 if G3 else gen_gemm2 if G2 else gen_gemm)(b)
    out += ".globl oproj_kernel\n.p2align 8\n.type oproj_kernel,@function\n" + "\n".join(b.L) + "\n"
    out += '.section .rodata,"a"\n.p2align 6\n' + kd("attn_kernel", NVG1) + ".p2align 6\n" + kd("oproj_kernel", 240 if G3 else 192 if G2 else 208)
    open(sys.argv[1] if len(sys.argv) > 1 else "standalone__gqa_block_cached__near_ridge.s", "w").write(out)
main()
```
